```python
import torch

def _softmax(x, axis=-1):
    return torch.softmax(x, dim=axis)
def _gelu(x):
    return torch.nn.functional.gelu(x, approximate="tanh")
def _silu(x):
    return torch.nn.functional.silu(x)
def _sigmoid(x):
    return torch.sigmoid(x)
def _layernorm(x, axis=-1, eps=1e-5):
    m = x.mean(dim=axis, keepdim=True)
    v = x.var(dim=axis, keepdim=True, unbiased=False)
    return (x - m) / torch.sqrt(v + eps)
def _scatter_add(tgt, idx, src, axis=0):
    return tgt.clone().index_add_(axis, idx, src)
def _segment_sum(src, seg, n):
    out = torch.zeros((n,) + src.shape[1:], dtype=src.dtype)
    return out.index_add_(0, seg, src)
def _pad(x, pw):
    flat = tuple(v for pair in reversed(pw) for v in pair)
    return torch.nn.functional.pad(x, flat)

kernel_name = 'concat_heads__ssm_conv_s4__linear_attn_block__prompt'

def setup_inputs():

    _w = (lambda a: (lambda t: t.to(torch.bfloat16) if t.is_floating_point() else t)(torch.as_tensor(a)))
    def _A_setup():
        B, L, D, N = 1, 2048, 448, 256
        A_re = -(lambda _x: torch.exp(torch.as_tensor(_x)))((lambda *s: torch.randn(*s, dtype=torch.bfloat16) * 3.2)(D, N))
        A_im = torch.pi * (lambda *s: torch.randn(*s, dtype=torch.bfloat16) * 0.05)(D, N)
        B_re = (lambda *s: torch.randn(*s, dtype=torch.bfloat16) * 0.2)(D, N)
        B_im = (lambda *s: torch.randn(*s, dtype=torch.bfloat16) * 0.2)(D, N)
        C_re = (lambda *s: torch.randn(*s, dtype=torch.bfloat16) * 0.2)(D, N)
        C_im = (lambda *s: torch.randn(*s, dtype=torch.bfloat16) * 0.2)(D, N)
        log_dt = (lambda *s: torch.randn(*s, dtype=torch.bfloat16) * 0.05)(D) * 0.5 - 4.0
        Dskip = (lambda *s: torch.randn(*s, dtype=torch.bfloat16) * 0.05)(D)
        return {
            "u": _w((lambda *s: torch.randn(*s, dtype=torch.bfloat16) * 0.05)(B, L, D)),
            "A_re": _w(A_re),
            "A_im": _w(A_im),
            "B_re": _w(B_re),
            "B_im": _w(B_im),
            "C_re": _w(C_re),
            "C_im": _w(C_im),
            "log_dt": _w(log_dt),
            "Dskip": _w(Dskip),
        }
    _A_in = _A_setup()

    def _B_setup():
        B, S, D = 1, 2048, 448
        return {
            "x": _w((lambda *s: torch.randn(*s, dtype=torch.bfloat16) * 0.05)(B, S, D)),
            "wqkv": _w((lambda *s: torch.randn(*s, dtype=torch.bfloat16) * 0.8)(D, 3 * D)),
            "wo": _w((lambda *s: torch.randn(*s, dtype=torch.bfloat16) * 0.1)(D, D)),
        }
    _B_in = _B_setup()

    return {
        "A_u": _A_in["u"],
        "A_A_re": _A_in["A_re"],
        "A_A_im": _A_in["A_im"],
        "A_B_re": _A_in["B_re"],
        "A_B_im": _A_in["B_im"],
        "A_C_re": _A_in["C_re"],
        "A_C_im": _A_in["C_im"],
        "A_log_dt": _A_in["log_dt"],
        "A_Dskip": _A_in["Dskip"],
        "B_x": _B_in["x"],
        "B_wqkv": _B_in["wqkv"],
        "B_wo": _B_in["wo"],
    }

def reference(A_u, A_A_re, A_A_im, A_B_re, A_B_im, A_C_re, A_C_im, A_log_dt, A_Dskip, B_x, B_wqkv, B_wo):
    def _A_ref(u, A_re, A_im, B_re, B_im, C_re, C_im, log_dt, Dskip):
        Bsz, L, D = u.shape
        dt = torch.exp(log_dt)[:, None]
        A = A_re + 1j * A_im
        Bc = B_re + 1j * B_im
        Cc = C_re + 1j * C_im
        logdA = dt * A
        dB = dt * Bc
        l = (lambda x, dt: x.to(dt))(torch.arange(L), A_re.dtype)
        P = torch.exp(logdA[:, :, None] * l[None, None, :])
        K = torch.einsum("dn,dnl,dn->dl", Cc, P, dB).real
        L2 = 2 * L
        Kp = _pad(K, ((0, 0), (0, L)))
        up = (lambda x, *d: x.permute(*d))(u, 0, 2, 1)
        up = _pad(up, ((0, 0), (0, 0), (0, L)))
        Kf = (lambda x, axes=(-2,-1): torch.fft.rfft2(x.float(), dim=axes))(Kp[:, None, :], axes=(-2, -1))
        Uf = (lambda x, axes=(-2,-1): torch.fft.rfft2(x.float(), dim=axes))(up[:, :, None, :], axes=(-2, -1))
        Yf = Uf * Kf[None, :, :, :]
        y = (lambda x, s, axes=(-2,-1): torch.fft.irfft2(x, s=s, dim=axes).to(torch.bfloat16))(Yf, (1, L2), axes=(-2, -1))[:, :, 0, :L]
        y = (lambda x, *d: x.permute(*d))(y, 0, 2, 1) + u * Dskip[None, None, :]
        return y

    def _B_ref(x, wqkv, wo):
        B, S, D = x.shape
        H = 16; Dh = D // H
        qkv = (lambda x, *d: x.permute(*d))((x @ wqkv).reshape(B, S, 3, H, Dh), 2, 0, 3, 1, 4)
        q, k, v = qkv[0], qkv[1], qkv[2]
        phi = lambda t: torch.where(t > 0, t + 1, torch.exp(t)) + 1e-6
        pq, pk = phi(q), phi(k)
        kv = torch.einsum("bhsd,bhse->bhde", pk, v)
        z = torch.einsum("bhsd->bhd", pk)
        num = torch.einsum("bhqd,bhde->bhqe", pq, kv)
        den = torch.einsum("bhqd,bhd->bhq", pq, z)[..., None] + 1e-6
        o = num / den
        return (lambda x, *d: x.permute(*d))(o, 0, 2, 1, 3).reshape(B, S, D) @ wo

    a = _A_ref(A_u, A_A_re, A_A_im, A_B_re, A_B_im, A_C_re, A_C_im, A_log_dt, A_Dskip)
    b = _B_ref(B_x, B_wqkv, B_wo)
    return torch.concatenate([a, b], axis=-1)
```

```python
import re

TRANS = ("v_exp_f32", "v_log_f32", "v_rcp_f32", "v_rsq_f32", "v_sqrt_f32", "v_sin_f32", "v_cos_f32")


def _regs(tok):
    t = tok.strip()
    t = t.lstrip("-")
    if t.startswith("abs(") or t.startswith("|"):
        t = t.replace("abs(", "").replace(")", "").replace("|", "")
    m = re.fullmatch(r"([vsa])(\d+)", t)
    if m:
        return [(m.group(1), int(m.group(2)))]
    m = re.fullmatch(r"([vsa])\[(\d+):(\d+)\]", t)
    if m:
        return [(m.group(1), i) for i in range(int(m.group(2)), int(m.group(3)) + 1)]
    if t in ("vcc", "vcc_lo", "vcc_hi"):
        return [("x", "vcc")]
    if t in ("exec", "exec_lo", "exec_hi"):
        return [("x", "exec")]
    if t == "m0":
        return [("x", "m0")]
    return []


def split_ops(rest):
    ops, depth, cur = [], 0, ""
    for ch in rest:
        if ch in "[(":
            depth += 1
        if ch in "])":
            depth -= 1
        if ch == "," and depth == 0:
            ops.append(cur.strip())
            cur = ""
        else:
            cur += ch
    if cur.strip():
        ops.append(cur.strip())
    mods = []
    if ops:
        parts = ops[-1].split()
        ops[-1] = parts[0]
        mods = parts[1:]
    return ops, mods


class Ins:
    def __init__(self, text):
        self.text = text
        t = text.split(";")[0].strip()
        self.mn = t.split()[0]
        rest = t[len(self.mn):].strip()
        self.ops, self.mods = split_ops(rest) if rest else ([], [])
        mn = self.mn
        self.dst, self.src = [], []
        self.kind = "other"
        R = [_regs(o) for o in self.ops]
        flat = lambda l: [x for y in l for x in y]
        if mn.startswith("v_mfma"):
            self.kind = "mfma"
            self.dst = R[0]
            self.ab = R[1] + R[2]
            self.c = R[3]
            self.src = self.ab + self.c
            self.passes = 4 if "16x16x32" in mn else 8
            assert "16x16x32" in mn or "32x32x16" in mn, mn
        elif mn.startswith("v_"):
            self.kind = "valu"
            if mn.startswith("v_permlane"):
                self.dst = R[0] + R[1]
                self.src = R[0] + R[1]
            else:
                self.dst = R[0]
                self.src = flat(R[1:])
                if mn.startswith("v_fmac") or mn.startswith("v_pk_fmac"):
                    self.src += R[0]
                if mn.startswith("v_cndmask") and len(self.ops) == 3:
                    self.src += [("x", "vcc")]
                if "_co_" in mn:
                    self.dst = R[0] + R[1]
                    self.src = flat(R[2:])
                if mn.startswith("v_cmpx"):
                    self.dst = self.dst + [("x", "exec")]
        elif mn.startswith("ds_"):
            self.kind = "ds"
            if mn.startswith("ds_read") or "_rtn" in mn or mn.startswith("ds_bpermute") or mn.startswith("ds_swizzle"):
                self.dst = R[0]
                self.src = flat(R[1:])
            else:
                self.src = flat(R)
            if "addtid" in mn:
                self.src += [("x", "m0")]
        elif mn.startswith("buffer_") or mn.startswith("global_"):
            self.kind = "vmem"
            lds = "lds" in self.mods
            if ("_load" in mn) and not lds:
                self.dst = R[0]
                self.src = flat(R[1:])
            elif "atomic" in mn and "sc0" in self.mods:
                self.dst = R[0]
                self.src = flat(R)
            else:
                self.src = flat(R)
            if lds:
                self.src += [("x", "m0")]
            self.wide_store = ("store" in mn) and ("x4" in mn or "x3" in mn)
            if self.wide_store:
                self.data = R[0] if mn.startswith("buffer_") else R[1]
        elif mn.startswith("s_"):
            self.kind = "salu"
            if mn.startswith(("s_cmp", "s_cbranch", "s_branch", "s_waitcnt", "s_barrier", "s_nop", "s_endpgm",
                              "s_sleep", "s_setprio", "s_bitcmp")):
                self.src = flat(R)
            else:
                self.dst = R[0] if R else []
                self.src = flat(R[1:])
                if "saveexec" in mn:
                    self.dst = self.dst + [("x", "exec")]
        self.states = 1
        if mn == "s_nop":
            self.states = int(self.ops[0]) + 1
        self.trans = mn.replace("_e32", "").replace("_e64", "") in TRANS
        self.dpp = "_dpp" in mn


class Asm:
    def __init__(self):
        self.items = []
        self.vm = []

    def __call__(self, s):
        for line in s.split("\n"):
            line = line.strip()
            if line:
                self.items.append(line)

    def vmem(self, s, tag=None):
        self(s)
        self.vm.append(tag)

    def wait_vm(self, tags, extra=""):
        if not isinstance(tags, (list, tuple, set)):
            tags = [tags]
        last = -1
        for i, t in enumerate(self.vm):
            if t in tags:
                last = i
        n = len(self.vm) - 1 - last
        assert n <= 63
        if last >= 0:
            self(f"s_waitcnt vmcnt({n}){extra}")
            self.vm = self.vm[last + 1:]
        elif extra:
            self(f"s_waitcnt{extra}")

    def wait_vm_all(self, extra=""):
        self(f"s_waitcnt vmcnt(0){extra}")
        self.vm = []

    def finalize(self, check_only=False):
        out = []
        pos = 0
        vw, tw, mw, mcr, wsr = {}, {}, {}, {}, {}
        sw = {}
        m0w = -100
        nops = 0
        for line in self.items:
            if line == ";FLUSH":
                need = 0
                for (p, ps, d) in mw.values():
                    need = max(need, (8 if ps == 4 else 12) - (pos - p - 1))
                for p in vw.values():
                    need = max(need, 2 - (pos - p - 1))
                for p in sw.values():
                    need = max(need, 5 - (pos - p - 1))
                for p in wsr.values():
                    need = max(need, 2 - (pos - p - 1))
                need = max(need, 1 - (pos - m0w - 1))
                while need > 0:
                    k = min(need, 16)
                    out.append(f"s_nop {k-1}")
                    pos += k
                    need -= k
                    nops += k
                continue
            if line.endswith(":") or line.startswith(".") or line.startswith(";"):
                out.append(line)
                continue
            I = Ins(line)
            need = 0

            def req(ppos, ws):
                nonlocal need
                d = ws - (pos - ppos - 1)
                if d > need:
                    need = d
            vsrc = [r for r in I.src if r[0] == "v"]
            vdst = [r for r in I.dst if r[0] == "v"]
            ssrc = [r for r in I.src if r[0] in ("s", "x")]
            if I.kind == "mfma":
                for r in vsrc:
                    if r in vw:
                        req(vw[r], 2)
                for r in I.ab:
                    if r in mw:
                        p, ps, d = mw[r]
                        req(p, 8 if ps == 4 else 12)
                for r in I.c:
                    if r in mw:
                        p, ps, d = mw[r]
                        if d == tuple(I.c) and ps == I.passes:
                            pass
                        else:
                            req(p, 6 if ps == 4 else 10)
                for r in vdst:
                    if r in mw and r not in I.c:
                        p, ps, d = mw[r]
                        req(p, 8 if ps == 4 else 12)
                if ("x", "exec") in sw:
                    req(sw[("x", "exec")], 4)
            else:
                for r in vsrc + vdst:
                    if r in mw:
                        p, ps, d = mw[r]
                        req(p, 8 if ps == 4 else 12)
                if I.kind == "valu":
                    for r in vdst:
                        if r in mcr:
                            p, ps = mcr[r]
                            req(p, 3 if ps == 4 else 7)
                        if r in wsr:
                            req(wsr[r], 2)
                    if not I.trans:
                        for r in vsrc:
                            if r in tw:
                                req(tw[r], 1)
                    if I.mn.startswith("v_permlane") or I.dpp:
                        for r in vsrc:
                            if r in vw:
                                req(vw[r], 2)
                        if ("x", "exec") in sw:
                            req(sw[("x", "exec")], 5)
                    if I.mn.startswith(("v_readlane", "v_readfirstlane")):
                        for r in vsrc:
                            if r in vw:
                                req(vw[r], 1)
                        for r in ssrc:
                            if r in sw:
                                req(sw[r], 4)
                        if ("x", "exec") in sw:
                            req(sw[("x", "exec")], 4)
                    for r in ssrc:
                        if r in sw:
                            req(sw[r], 2)
                elif I.kind in ("vmem", "ds"):
                    for r in vdst:
                        if r in wsr:
                            req(wsr[r], 1)
                    for r in vsrc:
                        if r in tw:
                            req(tw[r], 1)
                    for r in ssrc:
                        if r in sw:
                            req(sw[r], 5)
                    if ("x", "m0") in I.src:
                        req(m0w, 1)
                elif I.kind == "salu":
                    for r in ssrc:
                        if r in sw:
                            req(sw[r], 1 if r != ("x", "vcc") else 1)
                    if I.mn.startswith("s_cbranch_vcc") and ("x", "vcc") in sw:
                        req(sw[("x", "vcc")], 1)
            while need > 0:
                k = min(need, 16)
                out.append(f"s_nop {k-1}")
                pos += k
                need -= k
                nops += k
            out.append(line)
            if I.kind == "mfma":
                for r in vdst:
                    mw[r] = (pos, I.passes, tuple(I.dst))
                    vw.pop(r, None)
                    tw.pop(r, None)
                for r in I.c:
                    if r[0] == "v":
                        mcr[r] = (pos, I.passes)
            else:
                for r in vdst:
                    mw.pop(r, None)
                    if I.kind == "valu":
                        vw[r] = pos
                        if I.trans:
                            tw[r] = pos
                        else:
                            tw.pop(r, None)
                    else:
                        vw.pop(r, None)
                        tw.pop(r, None)
                if I.kind == "valu":
                    for r in I.dst:
                        if r[0] in ("s", "x"):
                            sw[r] = pos
                elif I.kind == "salu":
                    for r in I.dst:
                        sw.pop(r, None)
                        if r == ("x", "m0"):
                            m0w = pos
                if I.kind == "vmem" and getattr(I, "wide_store", False):
                    for r in I.data:
                        wsr[r] = pos
            pos += I.states
        self.nops = nops
        return "\n".join(("  " + l if not (l.endswith(":") or l.startswith(".") or l.startswith(";")) else l) for l in out) + "\n"
```

```python
import sys, struct
from asmfw import Asm

NAME = "concat_heads__ssm_conv_s4__linear_attn_block__prompt"

WS_UT = 0x000000
WS_PQ = 0x700000
WS_KV = 0x900000
WS_FT = 0x910000
WS_FF = 0x914000
WS_DBG = 0x920000
WS_SIZE = 0x1000000

TAB = 0
TABW = 4608
UT = 36864
CS = 16640
KB = UT + 4 * CS
KBW = 4608
YT = 0
YP = 4112
XL = 0
RING = 114688
WOL = 0
KVL = 58368
XCH = KVL + 65536
LDS_BYTES = 163840

LOG2E = 0x3fb8aa3b
INV2PI = 0x3e22f983
INV2PI_LO = struct.unpack("<I", struct.pack("<f", 0.15915494309189535 - struct.unpack("<f", struct.pack("<I", 0x3e22f983))[0]))[0]
F1EM6 = struct.unpack("<I", struct.pack("<f", 1e-6))[0]
F1P1EM6 = struct.unpack("<I", struct.pack("<f", 1.000001))[0]
SPIN_MAX = 200000


def vr(a, n=1):
    return f"v{a}" if n == 1 else f"v[{a}:{a+n-1}]"


def srd(A, s, lo, nbytes):
    A(f"s_mov_b32 s{s}, s{lo}")
    A(f"s_mov_b32 s{s+1}, s{lo+1}")
    A(f"s_mov_b32 s{s+2}, {nbytes}")
    A(f"s_mov_b32 s{s+3}, 0x00020000")


def cmul(A, d, a, b):
    assert d != a and d != b
    A(f"v_pk_mul_f32 {vr(d,2)}, {vr(a,2)}, {vr(b,2)} op_sel_hi:[0,1]")
    A(f"v_pk_fma_f32 {vr(d,2)}, {vr(a,2)}, {vr(b,2)}, {vr(d,2)} op_sel:[1,1,0] op_sel_hi:[1,0,1] neg_lo:[1,0,0]")


def cmul_many(A, jobs):
    for (d, a, b) in jobs:
        assert d != a and d != b
        A(f"v_pk_mul_f32 {vr(d,2)}, {vr(a,2)}, {vr(b,2)} op_sel_hi:[0,1]")
    for (d, a, b) in jobs:
        A(f"v_pk_fma_f32 {vr(d,2)}, {vr(a,2)}, {vr(b,2)}, {vr(d,2)} op_sel:[1,1,0] op_sel_hi:[1,0,1] neg_lo:[1,0,0]")


_lbl = [0]


def lab(p):
    _lbl[0] += 1
    return f"L{p}_{_lbl[0]}"


def get_nonce(A, vt, vz, sN, stmp):
    l0, l1 = lab("nn"), lab("nd")
    A(f"v_mov_b32 {vr(vz)}, 0")
    A(f"s_mov_b32 s{stmp}, 0")
    A(f"{l0}:")
    A(f"global_load_dword {vr(vt)}, {vr(vz)}, s[42:43] sc1")
    A("s_waitcnt vmcnt(0)")
    A(f"v_readfirstlane_b32 s{sN}, {vr(vt)}")
    A(f"s_add_u32 s{stmp}, s{stmp}, 1")
    A(f"s_cmp_lg_u32 s{sN}, 0")
    A(f"s_cbranch_scc1 {l1}")
    A("s_sleep 1")
    A(f"s_cmp_lt_u32 s{stmp}, {SPIN_MAX}")
    A(f"s_cbranch_scc1 {l0}")
    A(f"{l1}:")
    A.vm = []


def poll_flags(A, vaddrs, vts, srd_s, soff, sN, stmp):
    l0, l1 = lab("pl"), lab("pd")
    A(f"s_mov_b32 s{stmp}, 0")
    A(f"{l0}:")
    for va, vt in zip(vaddrs, vts):
        A(f"buffer_load_dword {vr(vt)}, {vr(va)}, s[{srd_s}:{srd_s+3}], {soff} offen sc1")
    A("s_waitcnt vmcnt(0)")
    A(f"v_cmp_ne_u32 vcc, s{sN}, {vr(vts[0])}")
    if len(vts) > 1:
        A("s_mov_b64 s[70:71], vcc")
        A(f"v_cmp_ne_u32 vcc, s{sN}, {vr(vts[1])}")
        A("s_or_b64 vcc, vcc, s[70:71]")
    A(f"s_add_u32 s{stmp}, s{stmp}, 1")
    A("s_cmp_eq_u64 vcc, 0")
    A(f"s_cbranch_scc1 {l1}")
    A("s_sleep 1")
    A(f"s_cmp_lt_u32 s{stmp}, {SPIN_MAX}")
    A(f"s_cbranch_scc1 {l0}")
    A(f"{l1}:")
    A.vm = []


def role_A(A, do_T, do_A, sync, dbg):
    END = "L_end"
    A("s_sub_u32 s4, s2, 128")
    A("s_and_b32 s5, s4, 7")
    A("s_mul_i32 s5, s5, 14")
    A("s_lshr_b32 s8, s4, 3")
    A("s_add_u32 s5, s5, s8")
    A("s_mul_i32 s6, s4, 9363")
    A("s_lshr_b32 s6, s6, 16")
    A("s_mul_i32 s7, s6, 7")
    A("s_sub_u32 s7, s4, s7")
    A("s_waitcnt lgkmcnt(0)")
    srd(A, 48, 16, 1835008)
    srd(A, 56, 44, WS_SIZE)
    srd(A, 64, 40, 3670016)
    RAW = 10
    if do_T:
        A("v_lshrrev_b32 v2, 3, v1")
        A("v_and_b32 v3, 7, v1")
        A("v_bfe_u32 v4, v1, 4, 1")
        A("s_and_b32 s8, s3, 3")
        A("s_lshl_b32 s8, s8, 1")
        A("v_or_b32 v4, s8, v4")
        A("v_xor_b32 v3, v3, v4")
        A("s_lshl_b32 s8, s6, 7")
        A("s_lshl_b32 s9, s3, 3")
        A("s_add_u32 s8, s8, s9")
        A("s_sub_u32 s8, s8, 8")
        A("v_add_u32 v2, s8, v2")
        A("v_mul_i32_i24 v2, 896, v2")
        A("v_lshl_add_u32 v2, v3, 4, v2")
        A("s_lshl_b32 s8, s7, 7")
        A("v_add_u32 v2, s8, v2")
        A("s_lshl_b32 s9, s3, 10")
        A(f"s_add_u32 m0, s9, {KB}")
        A(f"v_add_u32 v3, {64*896}, v2")
        A.vmem("buffer_load_dwordx4 v2, s[48:51], 0 offen lds", "tile")
        A(f"s_add_u32 m0, s9, {KB+8192}")
        A(f"v_add_u32 v4, {128*896}, v2")
        A.vmem("buffer_load_dwordx4 v3, s[48:51], 0 offen lds", "tile")
        l = lab("t17")
        A("s_cmp_lg_u32 s3, 0")
        A(f"s_cbranch_scc1 {l}")
        A(f"s_mov_b32 m0, {KB+16384}")
        A("s_nop 0")
        A("buffer_load_dwordx4 v4, s[48:51], 0 offen lds")
        if sync:
            l2 = lab("nonce")
            A("s_cmp_lg_u32 s4, 0")
            A(f"s_cbranch_scc1 {l2}")
            A("s_memrealtime s[8:9]")
            A("v_mov_b32 v5, 0")
            A("s_waitcnt lgkmcnt(0)")
            A("s_or_b32 s8, s8, 1")
            A("v_mov_b32 v6, s8")
            A("global_store_dword v5, v6, s[42:43] sc0 sc1")
            A(f"{l2}:")
        A(f"{l}:")
    if do_A:
        A("s_lshl_b32 s8, s5, 11")
        A("v_lshl_add_u32 v5, v0, 2, s8")
        for i in range(6):
            A.vmem(f"global_load_dword v{RAW+i}, v5, s[{18+2*i}:{19+2*i}]", "par")
        A("s_lshl_b32 s8, s5, 3")
        A("s_load_dwordx2 s[10:11], s[30:31], s8")
        A("s_load_dwordx2 s[12:13], s[32:33], s8")
    if do_T:
        l = lab("init")
        A("s_cmp_ge_u32 s4, 16")
        A(f"s_cbranch_scc1 {l}")
        A("s_cmp_ge_u32 s3, 4")
        A(f"s_cbranch_scc1 {l}")
        for i in range(4):
            A(f"v_mov_b32 v{20+i}, 0")
        A("v_lshlrev_b32 v6, 4, v0")
        A("s_lshl_b32 s8, s4, 12")
        A(f"s_add_u32 s8, s8, {WS_KV}")
        A("buffer_store_dwordx4 v[20:23], v6, s[56:59], s8 offen sc0 sc1")
        A(f"{l}:")
        A("v_lshrrev_b32 v6, 4, v1")
        A("v_lshlrev_b32 v6, 5, v6")
        A("v_and_b32 v7, 3, v1")
        A("v_lshl_add_u32 v6, v7, 3, v6")
        A("v_bfe_u32 v8, v1, 2, 2")
        A("v_add_u32 v6, v6, v8")
        for s in range(4):
            for u in range(2):
                d = 30 + 2 * s + u
                A(f"v_sub_u32 v8, {135 - 4*u - s}, v6")
                A("v_bfe_u32 v9, v8, 1, 1")
                A("v_lshrrev_b32 v20, 2, v8")
                A("v_and_or_b32 v9, v20, 6, v9")
                A("v_xor_b32 v9, s3, v9")
                A("v_lshlrev_b32 v8, 7, v8")
                A("v_lshl_add_u32 v8, v9, 4, v8")
                A(f"v_add_u32 v{d}, {KB}, v8")
        A("v_lshrrev_b32 v8, 2, v1")
        A("v_lshlrev_b32 v8, 6, v8")
        for s in range(4):
            A(f"v_xor_b32 v9, {s}, v7")
            A(f"v_lshl_add_u32 v{24+s}, v9, 4, v8")
        A("s_lshl_b32 s8, s7, 4")
        A("s_lshl_b32 s9, s3, 1")
        A("s_add_u32 s8, s8, s9")
        A("s_lshl_b32 s8, s8, 16")
        A("s_lshl_b32 s9, s6, 10")
        A("s_sub_u32 s8, s8, s9")
        A(f"s_add_u32 s8, s8, {WS_UT + 240*64}")
        A.wait_vm_all(" lgkmcnt(0)")
        A("s_barrier")
        for cl in range(2):
            for s in range(4):
                d = 40 + 16 * cl + 4 * s
                A(f"ds_read_b64_tr_b16 {vr(d,2)}, v{30+2*s} offset:{8*cl}")
                A(f"ds_read_b64_tr_b16 {vr(d+2,2)}, v{31+2*s} offset:{8*cl}")
        for cl in range(2):
            for s in range(4):
                d = 40 + 16 * cl + 4 * s
                k = 7 - (4 * cl + s)
                A(f"s_add_u32 s9, s8, {cl*65536 + s*16384}")
                A(f"s_waitcnt lgkmcnt({2*k})")
                A.vmem(f"buffer_store_dwordx4 {vr(d,4)}, v{24+s}, s[56:59], s9 offen sc0 sc1", "ut")
    if not do_A:
        if sync:
            raise NotImplementedError
        A("s_waitcnt vmcnt(0)")
        A(f"s_branch {END}")
        return

    A("s_lshr_b32 s14, s3, 1")
    A("s_and_b32 s15, s3, 1")
    A("s_waitcnt lgkmcnt(0)")
    A("s_lshl_b32 s8, s14, 4")
    A("s_lshr_b64 s[10:11], s[10:11], s8")
    A("s_lshl_b32 s10, s10, 16")
    A("s_lshr_b64 s[12:13], s[12:13], s8")
    A("s_lshl_b32 s69, s12, 16")
    A(f"v_mov_b32 v6, {LOG2E}")
    A("v_mul_f32 v6, s10, v6")
    A("v_exp_f32 v6, v6")
    A("v_cvt_pk_bf16_f32 v6, v6, v6")
    A("v_lshlrev_b32 v6, 16, v6")
    A("v_readfirstlane_b32 s68, v6")
    A(f"s_mul_i32 s72, s3, {TABW}")
    A("v_and_b32 v2, 15, v1")
    A("v_lshrrev_b32 v3, 4, v1")
    A("v_mul_u32_u24 v4, 288, v2")
    A("v_lshl_add_u32 v4, v3, 4, v4")
    A("v_add_u32 v4, s72, v4")
    A("v_mov_b32 v9, 0x3f80")
    T0, T1, T2 = 160, 164, 168
    for i in range(12):
        A(f"v_mov_b32 v{160+i}, 0")
    A("s_mov_b32 s73, 0")
    if not do_T:
        A.wait_vm_all()
    else:
        A.wait_vm("par")
    A("s_mov_b32 m0, s72")
    LP = lab("pass")
    A(f"{LP}:")
    E1, E2, E4, E8, Y1, E256, W = 20, 22, 24, 26, 28, 30, 32
    Y = {1: 28, 2: 34, 3: 36, 4: 38, 5: 40, 6: 42, 7: 44, 8: 46}
    X0 = {0: W}
    for i in range(1, 16):
        X0[i] = 54 + 2 * i
    YF, XF, XG = 112, 128, 144
    cv = [104]

    def cvt_write(src, row, neg=False):
        r = cv[0]
        cv[0] = 104 + (cv[0] - 104 + 1) % 8
        A(f"v_cvt_pk_bf16_f32 v{r}, v{src}, {'-' if neg else ''}v{src+1}")
        A(f"ds_write_addtid_b32 v{r} offset:{288*row}")

    def read_frags(base):
        for s in range(4):
            A(f"ds_read_b128 {vr(base+4*s,4)}, v4 offset:{64*s}")

    U = 86
    for i in range(6):
        A(f"v_lshlrev_b32 v{U+i}, 16, v{RAW+i}")
    A(f"v_mul_f32 v{U}, s68, v{U}")
    A(f"v_mul_f32 v{U+1}, s68, v{U+1}")
    A(f"v_mul_f32 v{U+2}, s68, v{U+2}")
    A(f"v_mul_f32 v{U+3}, s68, v{U+3}")
    A(f"v_mul_f32 v{U+6}, {LOG2E}, v{U}")
    A(f"v_mul_f32 v{U+7}, {INV2PI}, v{U+1}")
    A(f"s_mov_b32 s8, {INV2PI}")
    A(f"v_fma_f32 v{U+8}, v{U+1}, s8, -v{U+7}")
    A(f"v_fmac_f32 v{U+8}, {INV2PI_LO}, v{U+1}")
    cmul(A, W, U + 4, U + 2)
    anch = [(16, Y1, 48), (1, E1, 52), (256, E256, 98)]
    fa = {16: 0x41800000, 1: None, 256: 0x43800000}
    for (a, d, t) in anch:
        if a == 1:
            A(f"v_exp_f32 v{t}, v{U+6}")
            A(f"v_fract_f32 v{t+1}, v{U+7}")
        else:
            A(f"v_mul_f32 v{t}, {fa[a]}, v{U+6}")
            A(f"v_mul_f32 v{t+1}, {fa[a]}, v{U+7}")
            A(f"v_exp_f32 v{t}, v{t}")
            A(f"v_fract_f32 v{t+1}, v{t+1}")
            if a == 256:
                A(f"v_fmac_f32 v{t+1}, {fa[a]}, v{U+8}")
    for (a, d, t) in anch:
        A(f"v_cos_f32 v{t+2}, v{t+1}")
        A(f"v_sin_f32 v{t+3}, v{t+1}")
    for (a, d, t) in anch:
        A(f"v_pk_mul_f32 {vr(d,2)}, {vr(t+2,2)}, {vr(t,2)} op_sel_hi:[1,0]")
    A("ds_write_addtid_b32 v9 offset:0")
    cmul_many(A, [(Y[2], Y1, Y1), (E2, E1, E1), (X0[1], W, E1)])
    cvt_write(Y1, 1, True)
    cmul_many(A, [(Y[3], Y[2], Y1), (Y[4], Y[2], Y[2]), (E4, E2, E2), (X0[2], W, E2), (X0[3], X0[1], E2)])
    cvt_write(Y[2], 2, True)
    cmul_many(A, [(Y[5], Y1, Y[4]), (Y[6], Y[2], Y[4]), (Y[7], Y[3], Y[4]), (Y[8], Y[4], Y[4]), (E8, E4, E4)])
    cvt_write(Y[3], 3, True)
    cvt_write(Y[4], 4, True)
    tmpY = [48, 50, 52, 98, 100, 102, 86]
    cmul_many(A, [(tmpY[j - 9], Y[j - 8], Y[8]) for j in range(9, 13)])
    for j in range(5, 9):
        cvt_write(Y[j], j, True)
    cmul_many(A, [(tmpY[j - 9], Y[j - 8], Y[8]) for j in range(13, 16)])
    for j in range(9, 13):
        cvt_write(tmpY[j - 9], j, True)
    cmul_many(A, [(X0[4 + i], X0[i], E4) for i in range(4)])
    for j in range(13, 16):
        cvt_write(tmpY[j - 9], j, True)
    read_frags(YF)
    cmul_many(A, [(X0[8 + i], X0[i], E8) for i in range(4)])
    for i in range(0, 4):
        cvt_write(X0[i], i)
    cmul_many(A, [(X0[12 + i], X0[4 + i], E8) for i in range(4)])
    for i in range(4, 16):
        cvt_write(X0[i], i)
    read_frags(XF)

    if do_T and sync:
        l = lab("td")
        A(";FLUSH")
        A("s_cmp_lg_u32 s73, 0")
        A(f"s_cbranch_scc1 {l}")
        A("s_waitcnt vmcnt(0)")
        A("s_barrier")
        get_nonce(A, 5, 6, 74, 8)
        l2 = lab("td2")
        A("s_cmp_lg_u32 s3, 0")
        A(f"s_cbranch_scc1 {l2}")
        A("s_lshl_b32 s8, s4, 7")
        A(f"s_add_u32 s8, s8, {WS_FT}")
        A("v_mov_b32 v5, s74")
        A("s_mov_b64 exec, 1")
        A("buffer_store_dword v5, v6, s[56:59], s8 offen sc0 sc1")
        A("s_mov_b64 exec, -1")
        A(f"{l2}:")
        A(";FLUSH")
        A(f"{l}:")
    elif do_T:
        raise NotImplementedError

    X1 = [34 + 2 * i for i in range(8)]
    X2a = [86 + 2 * i for i in range(4)]
    X2b = [94 + 2 * i for i in range(4)]
    cmul_many(A, [(X1[i], X0[2 * i], E256) for i in range(4)])
    cmul_many(A, [(X1[i], X0[2 * i], E256) for i in range(4, 8)])
    cmul_many(A, [(X2a[t], X1[2 * t], E256) for t in range(4)])
    cmul_many(A, [(X2b[t], X2a[t], E256) for t in range(4)])
    A("s_waitcnt lgkmcnt(0)")
    rows1 = X1 + X2a + X2b
    for s in range(4):
        A(f"v_mfma_f32_16x16x32_bf16 {vr(T0,4)}, {vr(XF+4*s,4)}, {vr(YF+4*s,4)}, {vr(T0,4)}")
        for i in range(4 * s, 4 * s + 4):
            cvt_write(rows1[i], i)
    read_frags(XG)
    X3 = [56 + 2 * i for i in range(9)]
    cmul_many(A, [(X3[0], X2b[0], E256), (X3[1], X2b[2], E256)])
    cmul_many(A, [(X3[2], X3[0], E256), (X3[3], X3[1], E256)])
    cmul_many(A, [(X3[4], X3[2], E256), (X3[5], X3[3], E256)])
    cmul_many(A, [(X3[6], X3[4], E256), (X3[7], X3[5], E256)])
    cmul_many(A, [(X3[8], X3[6], E256)])
    A("s_waitcnt lgkmcnt(0)")
    for s in range(4):
        A(f"v_mfma_f32_16x16x32_bf16 {vr(T1,4)}, {vr(XG+4*s,4)}, {vr(YF+4*s,4)}, {vr(T1,4)}")
        for i in range(9):
            if i % 4 == s or (i == 8 and s == 3 and False):
                cvt_write(X3[i], i)
    read_frags(XF)
    for i in range(6):
        A(f"v_lshrrev_b32 v{RAW+i}, 16, v{RAW+i}")

    l = lab("dma")
    A(";FLUSH")
    A("s_cmp_lg_u32 s73, 0")
    A(f"s_cbranch_scc1 {l}")
    if sync:
        A("s_lshr_b32 s8, s5, 4")
        A("v_mul_u32_u24 v5, 7, v2")
        A("v_add_lshl_u32 v5, v5, s8, 7")
        A(f"s_mov_b32 s9, {WS_FT}")
        poll_flags(A, [5], [6], 56, "s9", 74, 8)
    A("v_lshlrev_b32 v5, 4, v1")
    A("s_lshl_b32 s8, s5, 16")
    A("s_lshl_b32 s9, s3, 13")
    A("s_add_u32 s8, s8, s9")
    if WS_UT:
        A(f"s_add_u32 s8, s8, {WS_UT}")
    A(f"s_mul_i32 s9, s14, {CS}")
    A("s_lshl_b32 s10, s15, 13")
    A("s_add_u32 s9, s9, s10")
    A(f"s_add_u32 s9, s9, {UT}")
    for i in range(8):
        A(f"s_add_u32 m0, s9, {1024*i}")
        A(f"s_add_u32 s10, s8, {1024*i}")
        A("buffer_load_dwordx4 v5, s[56:59], s10 offen sc1 lds")
    A("s_mov_b32 m0, s72")
    A("v_mov_b32 v6, 0")
    A("v_mov_b32 v7, 0")
    A(f"s_mul_i32 s8, s14, {KBW}")
    A(f"s_add_u32 s8, s8, {KB}")
    A(f"s_mul_i32 s9, s14, {CS}")
    A(f"s_add_u32 s9, s9, {UT + 16384}")
    A("s_cmp_eq_u32 s15, 0")
    A("s_cselect_b32 s8, s8, s9")
    A("s_cselect_b32 s9, 63, 15")
    A("v_and_b32 v5, s9, v1")
    A("v_lshl_add_u32 v5, v5, 3, s8")
    A("ds_write_b64 v5, v[6:7]")
    A(";FLUSH")
    A(f"{l}:")
    A("s_waitcnt lgkmcnt(0)")
    for s in range(4):
        A(f"v_mfma_f32_16x16x32_bf16 {vr(T2,4)}, {vr(XF+4*s,4)}, {vr(YF+4*s,4)}, {vr(T2,4)}")
    A("s_add_u32 s73, s73, 1")
    A("s_cmp_lt_u32 s73, 2")
    A(f"s_cbranch_scc1 {LP}")
    A(";FLUSH")

    A("v_lshl_add_u32 v5, v1, 4, s72")
    A(f"s_xor_b32 s8, s3, 1")
    A(f"s_mul_i32 s8, s8, {TABW}")
    A("v_lshl_add_u32 v6, v1, 4, s8")
    A(f"s_mul_i32 s9, s14, {KBW}")
    A(f"s_add_u32 s9, s9, {KB + 512}")
    A("v_lshlrev_b32 v7, 5, v2")
    LH1, LJ = lab("h1"), lab("kj")
    A("s_cmp_lg_u32 s15, 0")
    A(f"s_cbranch_scc1 {LH1}")
    A(f"ds_write_b128 v5, {vr(T1,4)}")
    A(f"ds_write_b128 v5, {vr(T2,4)} offset:1024")
    A("v_lshl_add_u32 v7, v3, 3, v7")
    A("v_add_u32 v7, s9, v7")
    A("s_waitcnt lgkmcnt(0)")
    A("s_barrier")
    A("ds_read_b128 v[20:23], v6")
    A("s_waitcnt lgkmcnt(0)")
    A(f"v_pk_add_f32 v[20:21], v[20:21], {vr(T0,2)}")
    A(f"v_pk_add_f32 v[22:23], v[22:23], {vr(T0+2,2)}")
    A("v_cvt_pk_bf16_f32 v24, v20, v21")
    A("v_cvt_pk_bf16_f32 v25, v22, v23")
    A("ds_write_b64 v7, v[24:25]")
    A(f"s_branch {LJ}")
    A(f"{LH1}:")
    A(f"ds_write_b128 v5, {vr(T0,4)}")
    A("s_waitcnt lgkmcnt(0)")
    A("s_barrier")
    A("ds_read_b128 v[20:23], v6")
    A("ds_read_b128 v[24:27], v6 offset:1024")
    A("v_add_u32 v7, s9, v7")
    A("v_lshl_add_u32 v8, v3, 10, v7")
    A("v_lshl_add_u32 v28, v3, 9, v7")
    A("v_lshl_add_u32 v29, v3, 4, v7")
    A("s_waitcnt lgkmcnt(0)")
    A(f"v_pk_add_f32 v[20:21], v[20:21], {vr(T1,2)}")
    A(f"v_pk_add_f32 v[22:23], v[22:23], {vr(T1+2,2)}")
    A(f"v_pk_add_f32 v[24:25], v[24:25], {vr(T2,2)}")
    A(f"v_pk_add_f32 v[26:27], v[26:27], {vr(T2+2,2)}")
    for hh in range(2):
        a0, a8 = 24 + 2 * hh, 25 + 2 * hh
        b = 30 + 6 * hh
        A(f"v_cvt_pk_bf16_f32 v{b}, v{a0}, v{a0}")
        A(f"v_cvt_pk_bf16_f32 v{b+1}, v{a0}, v{a0}")
        A(f"v_cvt_pk_bf16_f32 v{b+2}, v{a0}, v{a8}")
        A(f"v_cvt_pk_bf16_f32 v{b+3}, v{a8}, v{a8}")
        A(f"v_cvt_pk_bf16_f32 v{b+4}, v{a8}, v{a8}")
        A(f"v_cvt_pk_bf16_f32 v{b+5}, v{a8}, v{a8}")
    A("v_cvt_pk_bf16_f32 v42, v20, v20")
    A("v_cvt_pk_bf16_f32 v43, v20, v21")
    A("v_cvt_pk_bf16_f32 v44, v21, v21")
    A("v_cvt_pk_bf16_f32 v45, v22, v22")
    A("v_cvt_pk_bf16_f32 v46, v22, v22")
    A("v_cvt_pk_bf16_f32 v47, v22, v23")
    A("v_cvt_pk_bf16_f32 v48, v23, v23")
    A("v_cvt_pk_bf16_f32 v50, v20, v20")
    A("v_cvt_pk_bf16_f32 v51, v21, v22")
    o3 = 2048 - 8
    A("s_mov_b32 exec_lo, -1")
    A("s_mov_b32 exec_hi, 1")
    A(f"ds_write_b64 v8, v[30:31] offset:{o3}")
    A("s_mov_b32 exec_hi, 0")
    A(f"ds_write_b64 v8, v[30:31] offset:{o3+8}")
    A(f"ds_write_b64 v8, v[32:33] offset:{o3+16}")
    A(f"ds_write_b64 v8, v[34:35] offset:{o3+24}")
    A(f"ds_write_b64 v8, v[36:37] offset:{o3+512}")
    A(f"ds_write_b64 v8, v[36:37] offset:{o3+512+8}")
    A(f"ds_write_b64 v8, v[38:39] offset:{o3+512+16}")
    A(f"ds_write_b64 v8, v[40:41] offset:{o3+512+24}")
    A("s_mov_b32 exec_lo, 0")
    A("s_mov_b32 exec_hi, -1")
    A("v_subrev_u32 v28, 4, v28")
    A("ds_write_b32 v28, v42")
    A("ds_write_b64 v28, v[42:43] offset:4")
    A("ds_write_b64 v28, v[44:45] offset:12")
    A("ds_write_b64 v28, v[46:47] offset:20")
    A("ds_write_b32 v28, v48 offset:28")
    A("s_mov_b32 exec_lo, -2")
    A("s_mov_b32 exec_hi, 0")
    A("ds_write_b16 v29, v50 offset:510")
    A("s_mov_b32 exec_lo, -1")
    A("ds_write_b64 v29, v[50:51] offset:512")
    A("ds_write_b32 v29, v45 offset:520")
    A("ds_write_b16 v29, v48 offset:524")
    A("s_mov_b64 exec, -1")
    A(f"{LJ}:")

    A("v_sub_u32 v5, 15, v2")
    A("v_and_b32 v6, 3, v5")
    A("v_lshrrev_b32 v5, 2, v5")
    A("v_lshl_add_u32 v5, v3, 1, v5")
    A(f"v_mul_u32_u24 v7, {CS}, v6")
    A("v_xor_b32 v6, s14, v6")
    A("v_lshl_add_u32 v7, v6, 4, v7")
    A(f"v_add_u32 v7, {UT + 7*256}, v7")
    for u in range(2):
        if u:
            A("v_add_u32 v5, 1, v5")
        A("v_lshrrev_b32 v6, 1, v5")
        A("v_lshl_add_u32 v8, v6, 6, v7")
        A("v_and_b32 v6, 1, v5")
        A(f"v_lshl_add_u32 v{20+u}, v6, 3, v8")
    A("v_lshlrev_b32 v22, 5, v2")
    A("v_lshl_add_u32 v22, v3, 4, v22")
    A("s_sub_u32 s8, s9, 32")
    A("v_add_u32 v22, s8, v22")
    A("v_lshlrev_b32 v5, 2, v2")
    A("v_add_u32 v5, v5, v3")
    A("v_sub_u32 v5, 63, v5")
    A("v_lshrrev_b32 v6, 1, v5")
    A("v_lshlrev_b32 v6, 6, v6")
    A("v_and_b32 v5, 1, v5")
    A("v_lshl_add_u32 v6, v5, 3, v6")
    A("s_lshl_b32 s8, s14, 4")
    A(f"s_add_u32 s8, s8, {UT}")
    A("v_add_u32 v23, s8, v6")
    ACC = 24
    for i in range(16):
        A(f"v_mov_b32 v{ACC+i}, 0")
    AF, BF = 40, 72
    A("s_mov_b32 s73, 0")
    A("s_waitcnt vmcnt(0) lgkmcnt(0)")
    A("s_barrier")
    if dbg:
        A("v_lshlrev_b32 v5, 4, v0")
        A(f"s_mul_i32 s8, s5, 18432")
        A(f"s_add_u32 s8, s8, {WS_DBG}")
        for i in range(3):
            A(f"v_add_u32 v6, {KB + 8192*i}, v5")
            A("ds_read_b128 v[104:107], v6")
            A("s_waitcnt lgkmcnt(0)")
            if i == 2:
                A("v_cmp_gt_u32 vcc, 2048, v5")
                A("s_and_saveexec_b64 s[10:11], vcc")
            A(f"s_add_u32 s9, s8, {8192*i}")
            A("buffer_store_dwordx4 v[104:107], v5, s[56:59], s9 offen")
            A("s_waitcnt vmcnt(0)")
        A("s_mov_b64 exec, -1")
    LC1, LCJ = lab("c1"), lab("cj")
    A("s_cmp_lg_u32 s15, 0")
    A(f"s_cbranch_scc1 {LC1}")
    for hf, tiles in ((0, (0, 3, 4, 7)), (1, (1, 2, 5, 6))):
        if hf:
            A(f"{LC1}:")
        LL = lab("cv")
        A(f"{LL}:")
        tmax = max(tiles)
        jobs = [(t, c1, t - c1) for t in tiles for c1 in range(t + 1)]
        jobs.sort(key=lambda j: (max(j[1], j[2]), j[0]))
        issue = []
        for k in range(tmax + 1):
            issue.append(("A", k, 0))
            issue.append(("A", k, 1))
            issue.append(("B", k))
        n_issue = len(issue)

        def emit_issue(it):
            if it[0] == "A":
                A(f"ds_read_b64 {vr(AF+4*it[1]+2*it[2],2)}, v{20+it[2]} offset:{(7-it[1])*2048}")
            else:
                A(f"ds_read_b128 {vr(BF+4*it[1],4)}, v22 offset:{512*it[1]}")
        done = 0
        for it in issue[:15]:
            emit_issue(it)
            done += 1
        curk = -1
        for (t, c1, dl) in jobs:
            k = max(c1, dl)
            if k != curk:
                while done < n_issue and done < 15 + 3 * k:
                    emit_issue(issue[done])
                    done += 1
                A(f"s_waitcnt lgkmcnt({done - 3*(k+1)})")
                curk = k
            ai = ACC + 4 * tiles.index(t)
            A(f"v_mfma_f32_16x16x32_bf16 {vr(ai,4)}, {vr(AF+4*c1,4)}, {vr(BF+4*dl,4)}, {vr(ai,4)}")
        assert done == n_issue
        A("v_subrev_u32 v20, 256, v20")
        A("v_subrev_u32 v21, 256, v21")
        A("v_subrev_u32 v22, 64, v22")
        A("s_add_u32 s73, s73, 1")
        A("s_cmp_lt_u32 s73, 8")
        A(f"s_cbranch_scc1 {LL}")
        for i, t in enumerate(tiles):
            A(f"ds_read_b64 {vr(AF+2*i,2)}, v23 offset:{(7-t)*2048}")
        A(f"s_mul_i32 s8, s14, {YP}")
        A("v_lshl_add_u32 v5, v1, 3, s8")
        if YT:
            A(f"v_add_u32 v5, {YT}, v5")
        A("s_waitcnt lgkmcnt(0)")
        for i, t in enumerate(tiles):
            ai = ACC + 4 * i
            d0, d1 = AF + 2 * i, AF + 2 * i + 1
            b = BF + 4 * i
            A(f"v_and_b32 v{b}, 0xffff0000, v{d1}")
            A(f"v_lshlrev_b32 v{b+1}, 16, v{d1}")
            A(f"v_and_b32 v{b+2}, 0xffff0000, v{d0}")
            A(f"v_lshlrev_b32 v{b+3}, 16, v{d0}")
            for j in range(4):
                A(f"v_fma_f32 v{b+j}, v{b+j}, s69, v{ai+j}")
            A(f"v_cvt_pk_bf16_f32 v{d0}, v{b}, v{b+1}")
            A(f"v_cvt_pk_bf16_f32 v{d1}, v{b+2}, v{b+3}")
            A(f"ds_write_b64 v5, {vr(d0,2)} offset:{512*t}")
        if hf == 0:
            A(f"s_branch {LCJ}")
    A(f"{LCJ}:")
    A("v_bfe_u32 v5, v1, 2, 2")
    A(f"v_mul_u32_u24 v5, {YP}, v5")
    A("v_and_b32 v6, 3, v1")
    A("v_lshl_add_u32 v5, v6, 7, v5")
    A("v_lshl_add_u32 v5, v3, 3, v5")
    A("s_lshl_b32 s8, s3, 9")
    if YT:
        A(f"s_add_u32 s8, s8, {YT}")
    A("v_add_u32 v5, s8, v5")
    A("v_mul_u32_u24 v6, 1792, v1")
    A(f"s_mul_i32 s8, s3, {256*1792}")
    A("s_lshl_b32 s9, s5, 3")
    A("s_add_u32 s8, s8, s9")
    A("s_waitcnt lgkmcnt(0)")
    A("s_barrier")
    for i in range(4):
        A(f"ds_read_b64_tr_b16 {vr(40+2*i,2)}, v5 offset:{32*i}")
    for i in range(4):
        A(f"s_add_u32 s9, s8, {64*1792*i}")
        A(f"s_waitcnt lgkmcnt({3-i})")
        A(f"buffer_store_dwordx2 {vr(40+2*i,2)}, v6, s[64:67], s9 offen")
    A(f"s_branch {END}")


def phi_block(A, acc, tmp, dst, n=16):
    for i in range(n):
        A(f"v_mul_f32 v{tmp+i}, {LOG2E}, v{acc+i}")
        A(f"v_min_f32 v{tmp+i}, 0, v{tmp+i}")
    for i in range(n):
        A(f"v_exp_f32 v{tmp+i}, v{tmp+i}")
        A(f"v_add_f32 v{acc+i}, 1.0, v{acc+i}")
    for i in range(n):
        A(f"v_max_f32 v{tmp+i}, v{tmp+i}, v{acc+i}")
        A(f"v_add_f32 v{tmp+i}, {F1EM6}, v{tmp+i}")
    for i in range(n // 2):
        A(f"v_cvt_pk_bf16_f32 v{dst+i}, v{tmp+2*i}, v{tmp+2*i+1}")


def role_B(A, do_B1, do_B2, sync, dbg):
    END = "L_end"
    A("s_and_b32 s4, s2, 7")
    A("s_lshl_b32 s4, s4, 1")
    A("s_bfe_u32 s8, s2, 0x10003")
    A("s_or_b32 s4, s4, s8")
    A("s_lshr_b32 s5, s2, 4")
    A("s_and_b32 s6, s3, 3")
    A("s_lshr_b32 s7, s3, 2")
    A("s_waitcnt lgkmcnt(0)")
    srd(A, 48, 34, 1835008)
    srd(A, 52, 36, 1204224)
    srd(A, 56, 44, WS_SIZE)
    srd(A, 60, 38, 401408)
    srd(A, 64, 40, 3670016)
    A("v_and_b32 v2, 31, v1")
    A("v_lshrrev_b32 v3, 5, v1")
    A("v_bfe_u32 v4, v1, 2, 2")
    A("v_lshl_add_u32 v5, v3, 3, v4")
    A("v_bfe_u32 v6, v1, 4, 1")
    A("v_and_b32 v7, 3, v1")
    A("v_lshlrev_b32 v7, 3, v7")
    A("v_lshl_add_u32 v7, v6, 5, v7")
    A("v_lshrrev_b32 v6, 1, v4")
    A("v_lshlrev_b32 v6, 6, v6")
    if do_B1:
        A("v_lshrrev_b32 v8, 3, v1")
        A("v_and_b32 v9, 7, v1")
        A("v_lshrrev_b32 v10, 4, v1")
        A("s_lshl_b32 s8, s4, 7")
        A("s_lshl_b32 s9, s3, 4")
        A("s_add_u32 s8, s8, s9")
        A("v_add_u32 v11, s8, v8")
        A("v_mul_u32_u24 v11, 896, v11")
        A("v_xor_b32 v12, v9, v10")
        A("v_lshl_add_u32 v20, v12, 4, v11")
        A("v_xor_b32 v12, 4, v12")
        A("v_lshl_add_u32 v21, v12, 4, v11")
        A(f"v_add_u32 v21, {8*896}, v21")
        A("v_and_b32 v12, 1, v10")
        A("v_lshlrev_b32 v12, 2, v12")
        A("v_xor_b32 v12, v9, v12")
        A("v_lshlrev_b32 v12, 4, v12")
        A("v_mul_u32_u24 v13, 2688, v8")
        A("v_add_u32 v12, v12, v13")
        A("s_mul_i32 s8, s5, 112")
        A("v_add_u32 v22, s8, v12")
        A(f"s_mul_i32 s10, s6, {8*2688}")
        A("s_mul_i32 s8, s7, 896")
        A("s_add_u32 s10, s10, s8")
        A("s_add_u32 s10, s10, 896")
        A(f"s_mul_i32 s11, s3, {8*2688}")
        A("s_lshl_b32 s12, s3, 11")
        A("s_lshl_b32 s13, s3, 10")
        A(f"s_add_u32 s13, s13, {RING}")

        def issue_x(i, j):
            A(f"s_add_u32 m0, s12, {XL + i*16384 + j*1024}")
            A(f"s_movk_i32 s8, {i*128}")
            A.vmem(f"buffer_load_dwordx4 v{20+j}, s[48:51], s8 offen lds", ("x", i))

        def issue_w(h):
            A(f"s_add_u32 m0, s13, {(h % 6)*8192}")
            if h < 14:
                A(f"s_add_u32 s8, s10, {h*32*2688}")
            else:
                A(f"s_add_u32 s8, s11, {(h-14)*64*2688}")
            A.vmem(f"buffer_load_dwordx4 v22, s[52:55], s8 offen lds", ("w", h))
        issue_x(0, 0); issue_x(0, 1); issue_w(0); issue_w(1)
        issue_x(1, 0); issue_x(1, 1); issue_w(2); issue_w(3)
        issue_x(2, 0); issue_x(2, 1); issue_w(4); issue_w(5)
        A("v_bfe_u32 v8, v2, 1, 3")
        A("v_xor_b32 v8, v8, v3")
        A("s_lshl_b32 s8, s6, 12")
        A("v_lshl_add_u32 v9, v2, 7, s8")
        for tt in range(4):
            A(f"v_xor_b32 v10, {2*tt}, v8")
            A(f"v_lshl_add_u32 v{24+tt}, v10, 4, v9")
        A("s_mul_i32 s8, s7, 56")
        A("v_add_u32 v8, s8, v7")
        A("v_xor_b32 v8, v8, v6")
        A("v_lshl_add_u32 v8, v5, 7, v8")
        A(f"v_add_u32 v28, {RING}, v8")
        AK, AV, AQ = 32, 48, 64
        for i in range(48):
            A(f"v_mov_b32 v{32+i}, 0")
        FR = [80, 92]

        def reads_kv(h, k, fs):
            i, tt = h // 2, 2 * (h % 2) + k
            xo = (i % 4) * 16384
            A(f"ds_read_b128 {vr(fs,4)}, v{24+tt} offset:{xo}")
            so = (h % 6) * 8192 + k * 16 * 128
            for m in range(2):
                for u in range(2):
                    A(f"ds_read_b64_tr_b16 {vr(fs+4+4*m+2*u,2)}, v28 offset:{so + m*4096 + u*512}")

        def reads_q(h, tt, fs):
            i = h - 14
            xo = (i % 4) * 16384
            A(f"ds_read_b128 {vr(fs,4)}, v{24+tt} offset:{xo}")
            so = (h % 6) * 8192 + tt * 16 * 128
            for u in range(2):
                A(f"ds_read_b64_tr_b16 {vr(fs+4+2*u,2)}, v28 offset:{so + u*512}")

        def bump_x(delta):
            for tt in range(4):
                if delta > 0:
                    A(f"v_add_u32 v{24+tt}, {delta}, v{24+tt}")
                else:
                    A(f"v_subrev_u32 v{24+tt}, {-delta}, v{24+tt}")

        A.wait_vm([("x", 0), ("w", 0)])
        A("s_barrier")
        reads_kv(0, 0, FR[0])
        for h in range(14):
            reads_kv(h, 1, FR[1])
            A("s_waitcnt lgkmcnt(5)")
            f = FR[0]
            A(f"v_mfma_f32_32x32x16_bf16 {vr(AK,16)}, {vr(f,4)}, {vr(f+4,4)}, {vr(AK,16)}")
            A(f"v_mfma_f32_32x32x16_bf16 {vr(AV,16)}, {vr(f,4)}, {vr(f+8,4)}, {vr(AV,16)}")
            if h < 13:
                A.wait_vm([("x", (h + 1) // 2), ("w", h + 1)])
                A("s_barrier")
                if 1 <= h <= 8:
                    issue_x(3 + (h - 1) // 2, (h - 1) % 2)
                if 1 <= h <= 10:
                    issue_w(h + 5)
                if h == 7:
                    bump_x(65536)
                reads_kv(h + 1, 0, FR[0])
                A("s_waitcnt lgkmcnt(5)")
            else:
                A("s_waitcnt lgkmcnt(0)")
            f = FR[1]
            A(f"v_mfma_f32_32x32x16_bf16 {vr(AK,16)}, {vr(f,4)}, {vr(f+4,4)}, {vr(AK,16)}")
            A(f"v_mfma_f32_32x32x16_bf16 {vr(AV,16)}, {vr(f,4)}, {vr(f+8,4)}, {vr(AV,16)}")
        bump_x(-65536)
        PK, PV, TMP = 104, 112, 120
        A("v_cmp_eq_u32 vcc, 28, v2")
        A("v_mov_b32 v8, 0x3f803f80")
        for i in range(8):
            A(f"v_cvt_pk_bf16_f32 v{PV+i}, v{AV+2*i}, v{AV+2*i+1}")
        for i in range(8):
            A(f"v_cndmask_b32 v{PV+i}, v{PV+i}, v8, vcc")
        phi_block(A, AK, TMP, PK)
        A(f"v_mfma_f32_32x32x16_bf16 {vr(AV,16)}, {vr(PV,4)}, {vr(PK,4)}, 0")
        A(f"v_mfma_f32_32x32x16_bf16 {vr(AV,16)}, {vr(PV+4,4)}, {vr(PK+4,4)}, {vr(AV,16)}")
        sl = [4, 5, 0, 1]
        A("s_lshr_b32 s8, s3, 1")
        A("s_add_u32 s8, s8, 4")
        A("s_cmp_ge_u32 s8, 6")
        A("s_cselect_b32 s9, 6, 0")
        A("s_sub_u32 s8, s8, s9")
        A("s_lshl_b32 s8, s8, 13")
        A("s_and_b32 s9, s3, 1")
        A("s_lshl_b32 s9, s9, 12")
        A("s_add_u32 s8, s8, s9")
        A(f"s_add_u32 s8, s8, {RING}")
        A("v_lshl_add_u32 v8, v1, 4, s8")
        A("s_barrier")
        for q in range(4):
            A(f"ds_write_b128 v8, {vr(AV+4*q,4)} offset:{1024*q}")
        if sync:
            l = lab("ini")
            A(";FLUSH")
            A("s_cmp_lg_u32 s3, 0")
            A(f"s_cbranch_scc1 {l}")
            get_nonce(A, 9, 10, 74, 8)
            A("v_and_b32 v9, 15, v1")
            A("v_lshlrev_b32 v9, 7, v9")
            A(f"s_mov_b32 s9, {WS_FT}")
            poll_flags(A, [9], [10], 56, "s9", 74, 8)
            A(";FLUSH")
            A(f"{l}:")
        A.wait_vm_all(" lgkmcnt(0)")
        A("s_barrier")
        LW, LJ = lab("w47"), lab("rj")
        A("s_cmp_ge_u32 s3, 4")
        A(f"s_cbranch_scc1 {LW}")
        A("s_lshl_b32 s8, s6, 10")
        A(f"s_add_u32 s8, s8, {RING}")
        A("v_lshl_add_u32 v8, v1, 4, s8")
        for w in range(8):
            off = sl[w >> 1] * 8192 + (w & 1) * 4096
            A(f"ds_read_b128 {vr(TMP+4*w,4)}, v8 offset:{off}")
        A("v_lshlrev_b32 v9, 2, v2")
        A("v_lshl_add_u32 v9, v3, 9, v9")
        A("s_lshl_b32 s8, s5, 13")
        A("s_lshl_b32 s9, s6, 10")
        A("s_add_u32 s8, s8, s9")
        A(f"s_add_u32 s8, s8, {WS_KV}")
        A("s_add_u32 s9, s8, 4096")
        A("s_waitcnt lgkmcnt(0)")
        A("s_barrier")
        for hd in range(2):
            b = TMP + 16 * hd
            for p in range(2):
                A(f"v_pk_add_f32 {vr(b+2*p,2)}, {vr(b+2*p,2)}, {vr(b+4+2*p,2)}")
                A(f"v_pk_add_f32 {vr(b+8+2*p,2)}, {vr(b+8+2*p,2)}, {vr(b+12+2*p,2)}")
            for p in range(2):
                A(f"v_pk_add_f32 {vr(b+2*p,2)}, {vr(b+2*p,2)}, {vr(b+8+2*p,2)}")
            for j in range(4):
                A(f"buffer_atomic_add_f32 v{b+j}, v9, s[56:59], s{8+hd} offen offset:{128*j}")
        A(f"s_branch {LJ}")
        A(f"{LW}:")
        A("s_barrier")
        A(f"s_mul_i32 s14, s6, {16*2688}")
        A("s_lshl_b32 s15, s6, 11")
        A(f"s_add_u32 s15, s15, {RING}")

        def issue_q47(h):
            for j in range(2):
                A(f"s_add_u32 m0, s15, {(h % 6)*8192 + j*1024}")
                A(f"s_add_u32 s8, s14, {(h-14)*64*2688 + j*8*2688}")
                A(f"buffer_load_dwordx4 v22, s[52:55], s8 offen lds")
        for h in range(16, 20):
            issue_q47(h)
        A(f"{LJ}:")
        reads_q(14, 0, FR[0])
        for h in range(14, 21):
            for tt in range(4):
                cur, nxt = FR[tt % 2], FR[(tt + 1) % 2]
                if tt < 3:
                    reads_q(h, tt + 1, nxt)
                    A("s_waitcnt lgkmcnt(3)")
                elif h < 20:
                    if h == 17:
                        bump_x(65536)
                    reads_q(h + 1, 0, nxt)
                    A("s_waitcnt lgkmcnt(3)")
                else:
                    A("s_waitcnt lgkmcnt(0)")
                A(f"v_mfma_f32_32x32x16_bf16 {vr(AQ,16)}, {vr(cur+4,4)}, {vr(cur,4)}, {vr(AQ,16)}")
                if tt == 1 and 15 <= h < 20:
                    l = lab("qw")
                    A("s_cmp_lt_u32 s3, 4")
                    A(f"s_cbranch_scc1 {l}")
                    n = {15: 6, 16: 6, 17: 4, 18: 2, 19: 0}[h]
                    A(f"s_waitcnt vmcnt({n})")
                    A(f"{l}:")
                    A("s_barrier")
                    if h == 15:
                        l = lab("qi")
                        A("s_cmp_lt_u32 s3, 4")
                        A(f"s_cbranch_scc1 {l}")
                        issue_q47(20)
                        A(f"{l}:")
        phi_block(A, AQ, TMP, PK)
        A("v_cmp_eq_u32 vcc, 0, v3")
        A(f"v_cndmask_b32 v{PK+6}, 0, v{PK+6}, vcc")
        A(f"v_cndmask_b32 v{PK+7}, 0, v{PK+7}, vcc")
        A("v_lshlrev_b32 v8, 4, v1")
        A("s_lshl_b32 s8, s4, 2")
        A("s_add_u32 s8, s8, s6")
        A("s_lshl_b32 s8, s8, 4")
        A("s_lshl_b32 s9, s5, 1")
        A("s_add_u32 s8, s8, s9")
        A("s_add_u32 s8, s8, s7")
        A("s_lshl_b32 s8, s8, 11")
        A(f"s_add_u32 s8, s8, {WS_PQ}")
        A(f"buffer_store_dwordx4 {vr(PK,4)}, v8, s[56:59], s8 offen sc0 sc1")
        A(f"buffer_store_dwordx4 {vr(PK+4,4)}, v8, s[56:59], s8 offen offset:1024 sc0 sc1")
        A.wait_vm_all()
        A("s_barrier")
        if sync:
            l = lab("ff")
            A("s_cmp_lg_u32 s3, 0")
            A(f"s_cbranch_scc1 {l}")
            A("s_lshl_b32 s8, s2, 7")
            A(f"s_add_u32 s8, s8, {WS_FF}")
            A("v_mov_b32 v9, s74")
            A("v_mov_b32 v10, 0")
            A("s_mov_b64 exec, 1")
            A("buffer_store_dword v9, v10, s[56:59], s8 offen sc0 sc1")
            A("s_mov_b64 exec, -1")
            A(f"{l}:")
    if not do_B2:
        A("s_waitcnt vmcnt(0)")
        A(f"s_branch {END}")
        return
    A("s_cmp_ge_u32 s5, 7")
    A(f"s_cbranch_scc1 {END}")
    A("v_lshrrev_b32 v8, 3, v1")
    A("v_and_b32 v9, 7, v1")
    A("v_bfe_u32 v10, v1, 4, 1")
    A("v_lshlrev_b32 v10, 2, v10")
    A("v_xor_b32 v10, v9, v10")
    A("v_mul_u32_u24 v11, 896, v8")
    A("v_lshl_add_u32 v11, v10, 4, v11")
    A("s_lshl_b32 s8, s5, 7")
    A(f"s_mul_i32 s9, s3, {8*896}")
    A("s_add_u32 s8, s8, s9")
    A("s_lshl_b32 s9, s3, 10")
    for i in range(7):
        A(f"s_add_u32 m0, s9, {WOL + i*8192}")
        A(f"s_add_u32 s10, s8, {i*64*896}")
        A("buffer_load_dwordx4 v11, s[60:63], s10 offen lds")
    l = lab("wo8")
    A("s_cmp_lg_u32 s3, 0")
    A(f"s_cbranch_scc1 {l}")
    A(f"s_mov_b32 m0, {WOL + 57344}")
    A(f"s_add_u32 s10, s8, {448*896}")
    A("buffer_load_dwordx4 v11, s[60:63], s10 offen lds")
    if sync:
        A("v_lshlrev_b32 v12, 7, v1")
        A("v_add_u32 v13, 8192, v12")
        A(f"s_mov_b32 s10, {WS_FF}")
        poll_flags(A, [12, 13], [14, 15], 56, "s10", 74, 11)
    A(";FLUSH")
    A(f"{l}:")
    if sync:
        A("s_barrier")
    A("v_lshrrev_b32 v10, 4, v1")
    A("v_xor_b32 v10, v9, v10")
    A("v_lshlrev_b32 v12, 7, v8")
    A("v_lshl_add_u32 v13, v10, 4, v12")
    A("v_xor_b32 v14, 64, v13")
    A("s_lshl_b32 s8, s3, 13")
    A(f"s_add_u32 s9, s8, {WS_KV}")
    for k in range(8):
        A(f"s_add_u32 m0, s8, {KVL + k*1024}")
        A(f"s_add_u32 s10, s9, {k*1024}")
        A(f"buffer_load_dwordx4 v{13 + (k & 1)}, s[56:59], s10 offen sc1 lds")
    PQ = 128
    A("v_lshlrev_b32 v12, 4, v1")
    A("s_lshl_b32 s8, s4, 2")
    A("s_add_u32 s8, s8, s6")
    A("s_lshl_b32 s8, s8, 15")
    A("s_lshl_b32 s9, s7, 14")
    A("s_add_u32 s8, s8, s9")
    A(f"s_add_u32 s8, s8, {WS_PQ}")
    for i in range(4):
        if i:
            A("s_add_u32 s8, s8, 4096")
        for j in range(4):
            A(f"buffer_load_dwordx4 {vr(PQ+16*i+4*j,4)}, v12, s[56:59], s8 offen offset:{1024*j} sc1")
    A("v_bfe_u32 v8, v2, 1, 3")
    A("v_xor_b32 v8, v8, v3")
    A("s_lshl_b32 s8, s7, 15")
    A(f"s_add_u32 s8, s8, {KVL}")
    A("v_lshl_add_u32 v9, v2, 7, s8")
    for i in range(4):
        A(f"v_xor_b32 v10, {2*i}, v8")
        A(f"v_lshl_add_u32 v{20+i}, v10, 4, v9")
    A("v_lshl_add_u32 v8, v3, 2, v4")
    A("v_xor_b32 v9, v7, v6")
    A("v_lshl_add_u32 v8, v8, 7, v9")
    A(f"s_mul_i32 s8, s7, {224*128}")
    if WOL:
        A(f"s_add_u32 s8, s8, {WOL}")
    A("v_add_u32 v24, s8, v8")
    A("v_xor_b32 v25, 64, v24")
    O0, O1 = 32, 48
    for i in range(32):
        A(f"v_mov_b32 v{32+i}, 0")
    A("v_cmp_eq_u32 s[76:77], 0, v3")
    NUM = [64, 80]
    KF = 96
    KP = 112
    OP = 120
    WF = 192
    A("s_waitcnt vmcnt(0)")
    A("s_barrier")

    def kv_reads(h):
        for i in range(4):
            A(f"ds_read_b128 {vr(KF+4*i,4)}, v{20+i} offset:{4096*h}")

    def kv_cvt_mfma(h):
        for i in range(8):
            A(f"v_cvt_pk_bf16_f32 v{KP+i}, v{KF+2*i}, v{KF+2*i+1}")
        n = NUM[h % 2]
        A(f"v_mfma_f32_32x32x16_bf16 {vr(n,16)}, {vr(KP,4)}, {vr(PQ+8*h,4)}, 0")
        A(f"v_mfma_f32_32x32x16_bf16 {vr(n,16)}, {vr(KP+4,4)}, {vr(PQ+8*h+4,4)}, {vr(n,16)}")

    def wo_reads(h):
        for t in range(2):
            for ct in range(2):
                for u in range(2):
                    A(f"ds_read_b64_tr_b16 {vr(WF+8*t+4*ct+2*u,2)}, v{24+ct} offset:{(28*h + 16*t + 8*u)*128}")
    kv_reads(0)
    A("s_waitcnt lgkmcnt(0)")
    kv_cvt_mfma(0)
    for h in range(8):
        n = NUM[h % 2]
        if h < 7:
            kv_reads(h + 1)
        wo_reads(h)
        if h < 7:
            A("s_waitcnt lgkmcnt(8)")
            kv_cvt_mfma(h + 1)
        A(f"v_mov_b32 v8, v{n+12}")
        A(f"v_mov_b32 v9, v{n+12}")
        A("v_permlane32_swap_b32 v8, v9")
        A(f"v_add_f32 v9, {F1EM6}, v9")
        A("v_rcp_f32 v10, v9")
        A("v_cndmask_b32 v11, 0, v10, s[76:77]")
        for i in range(6):
            A(f"v_pk_mul_f32 {vr(n+2*i,2)}, {vr(n+2*i,2)}, v[10:11] op_sel_hi:[1,0]")
        for i in range(6, 8):
            A(f"v_pk_mul_f32 {vr(n+2*i,2)}, {vr(n+2*i,2)}, v[10:11] op_sel:[0,1] op_sel_hi:[1,1]")
        for i in range(8):
            A(f"v_cvt_pk_bf16_f32 v{OP+i}, v{n+2*i}, v{n+2*i+1}")
        A("s_waitcnt lgkmcnt(0)")
        for t in range(2):
            A(f"v_mfma_f32_32x32x16_bf16 {vr(O0,16)}, {vr(WF+8*t,4)}, {vr(OP+4*t,4)}, {vr(O0,16)}")
            A(f"v_mfma_f32_32x32x16_bf16 {vr(O1,16)}, {vr(WF+8*t+4,4)}, {vr(OP+4*t,4)}, {vr(O1,16)}")
    A("s_lshl_b32 s8, s3, 12")
    A(f"s_add_u32 s8, s8, {XCH}")
    A("v_lshl_add_u32 v8, v1, 4, s8")
    A("s_xor_b32 s8, s3, 4")
    A("s_lshl_b32 s8, s8, 12")
    A(f"s_add_u32 s8, s8, {XCH}")
    A("v_lshl_add_u32 v9, v1, 4, s8")
    A(";FLUSH")
    L1, LJ = lab("x1"), lab("xj")
    A("s_cmp_lg_u32 s7, 0")
    A(f"s_cbranch_scc1 {L1}")
    for q in range(4):
        A(f"ds_write_b128 v8, {vr(O1+4*q,4)} offset:{1024*q}")
    A(f"s_branch {LJ}")
    A(f"{L1}:")
    for q in range(4):
        A(f"ds_write_b128 v8, {vr(O0+4*q,4)} offset:{1024*q}")
    for i in range(16):
        A(f"v_mov_b32 v{O0+i}, v{O1+i}")
    A(f"{LJ}:")
    A("v_mul_u32_u24 v10, 1792, v2")
    A("v_lshl_add_u32 v10, v3, 4, v10")
    A("s_lshl_b32 s8, s4, 2")
    A("s_add_u32 s8, s8, s6")
    A(f"s_mul_i32 s8, s8, {32*1792}")
    A("s_lshl_b32 s9, s5, 7")
    A("s_add_u32 s8, s8, s9")
    A("s_lshl_b32 s9, s7, 6")
    A("s_add_u32 s8, s8, s9")
    A("s_add_u32 s8, s8, 896")
    A("s_waitcnt lgkmcnt(0)")
    A("s_barrier")
    for q in range(4):
        A(f"ds_read_b128 {vr(64+4*q,4)}, v9 offset:{1024*q}")
    for q in range(4):
        A(f"s_waitcnt lgkmcnt({3-q})")
        A(f"v_pk_add_f32 {vr(O0+4*q,2)}, {vr(O0+4*q,2)}, {vr(64+4*q,2)}")
        A(f"v_pk_add_f32 {vr(O0+4*q+2,2)}, {vr(O0+4*q+2,2)}, {vr(64+4*q+2,2)}")
        A(f"v_cvt_pk_bf16_f32 v{80+2*q}, v{O0+4*q}, v{O0+4*q+1}")
        A(f"v_cvt_pk_bf16_f32 v{81+2*q}, v{O0+4*q+2}, v{O0+4*q+3}")
    for p in range(2):
        b = 80 + 4 * p
        A(f"v_permlane32_swap_b32 v{b}, v{b+2}")
        A(f"v_permlane32_swap_b32 v{b+1}, v{b+3}")
        A(f"buffer_store_dwordx4 {vr(b,4)}, v10, s[64:67], s8 offen offset:{32*p}")
    A(f"s_branch {END}")


def gen_kernel(name, do_T, do_A, do_B1, do_B2, sync, dbg=False):
    A = Asm()
    A("s_cmp_ge_u32 s2, 240")
    A("s_cbranch_scc1 L_end")
    A("s_load_dwordx16 s[16:31], s[0:1], 0")
    A("s_load_dwordx8 s[32:39], s[0:1], 64")
    A("s_load_dwordx4 s[40:43], s[0:1], 96")
    A("s_load_dwordx2 s[44:45], s[0:1], 112")
    A("v_lshrrev_b32 v2, 6, v0")
    A("v_and_b32 v1, 63, v0")
    A("v_readfirstlane_b32 s3, v2")
    A("s_cmp_ge_u32 s2, 128")
    A("s_cbranch_scc1 L_roleA")
    if do_B1 or do_B2:
        role_B(A, do_B1, do_B2, sync, dbg)
    else:
        A("s_branch L_end")
    A(";FLUSH")
    A("L_roleA:")
    A.vm = []
    if do_T or do_A:
        role_A(A, do_T, do_A, sync, dbg)
    A("L_end:")
    A("s_endpgm")
    body = A.finalize()
    body = body.replace("L_end", f"L_end_{name}").replace("L_roleA", f"L_roleA_{name}")
    txt = f""".globl {name}
.p2align 8
.type {name},@function
{name}:
{body}"""
    kd = f""".p2align 6
.amdhsa_kernel {name}
  .amdhsa_next_free_vgpr 208
  .amdhsa_next_free_sgpr 96
  .amdhsa_accum_offset 208
  .amdhsa_group_segment_fixed_size 0
  .amdhsa_kernarg_size 120
  .amdhsa_user_sgpr_count 2
  .amdhsa_user_sgpr_kernarg_segment_ptr 1
  .amdhsa_system_sgpr_workgroup_id_x 1
.end_amdhsa_kernel
"""
    return txt, kd, A.nops


def build(mode, dbg=False):
    ref = open("cdna_kernels/%s.s.ref" % NAME).read()
    hdr = [l for l in ref.split("\n") if l.startswith(";") and "@launch" not in l]
    hdr = hdr[:16]
    if mode == "multi":
        ks = [("t_kernel", (1, 0, 0, 0, 0)), ("m_kernel", (0, 1, 1, 0, 0)), ("b2_kernel", (0, 0, 0, 1, 0))]
        launches = [f"; @launch kernel={n} grid=(240,1,1) block=(512,1,1) lds={LDS_BYTES}" for n, _ in ks]
    else:
        ks = [(NAME + "_kernel", (1, 1, 1, 1, 1))]
        launches = [f"; @launch grid=(240,1,1) block=(512,1,1) lds={LDS_BYTES}"]
    out = "\n".join(hdr + launches) + "\n"
    out += '.amdgcn_target "amdgcn-amd-amdhsa--gfx950"\n.text\n'
    kds = ""
    for n, f in ks:
        t, kd, nops = gen_kernel(n, *f, dbg=dbg)
        out += t
        kds += kd
        print(n, "nops inserted:", nops, file=sys.stderr)
    out += '.section .rodata,"a"\n' + kds
    return out


if __name__ == "__main__":
    mode = sys.argv[1] if len(sys.argv) > 1 else "single"
    path = sys.argv[2] if len(sys.argv) > 2 else "cdna_kernels/%s.s" % NAME
    dbg = len(sys.argv) > 3 and sys.argv[3] == "dbg"
    open(path, "w").write(build(mode, dbg))
```

```python
import sys, struct
from asmfw import Asm

NAME = "concat_heads__ssm_conv_s4__linear_attn_block__prompt"

WS_UT = 0x000000
WS_PQ = 0x700000
WS_KV = 0x900000
WS_FT = 0x910000
WS_FF = 0x914000
WS_DBG = 0x920000
WS_SIZE = 0x1000000

TAB = 0
TABW = 4608
UT = 36864
CS = 16640
KB = UT + 4 * CS
KBW = 4608
YT = 0
YP = 4112
XL = 0
RING = 114688
WOL = 0
KVL = 58368
XCH = KVL + 65536
LDS_BYTES = 163840

LOG2E = 0x3fb8aa3b
INV2PI = 0x3e22f983
INV2PI_LO = struct.unpack("<I", struct.pack("<f", 0.15915494309189535 - struct.unpack("<f", struct.pack("<I", 0x3e22f983))[0]))[0]
F1EM6 = struct.unpack("<I", struct.pack("<f", 1e-6))[0]
F1P1EM6 = struct.unpack("<I", struct.pack("<f", 1.000001))[0]
SPIN_MAX = 200000


def vr(a, n=1):
    return f"v{a}" if n == 1 else f"v[{a}:{a+n-1}]"


def srd(A, s, lo, nbytes):
    A(f"s_mov_b32 s{s}, s{lo}")
    A(f"s_mov_b32 s{s+1}, s{lo+1}")
    A(f"s_mov_b32 s{s+2}, {nbytes}")
    A(f"s_mov_b32 s{s+3}, 0x00020000")


def cmul(A, d, a, b):
    assert d != a and d != b
    A(f"v_pk_mul_f32 {vr(d,2)}, {vr(a,2)}, {vr(b,2)} op_sel_hi:[0,1]")
    A(f"v_pk_fma_f32 {vr(d,2)}, {vr(a,2)}, {vr(b,2)}, {vr(d,2)} op_sel:[1,1,0] op_sel_hi:[1,0,1] neg_lo:[1,0,0]")


def cmul_many(A, jobs):
    for (d, a, b) in jobs:
        assert d != a and d != b
        A(f"v_pk_mul_f32 {vr(d,2)}, {vr(a,2)}, {vr(b,2)} op_sel_hi:[0,1]")
    for (d, a, b) in jobs:
        A(f"v_pk_fma_f32 {vr(d,2)}, {vr(a,2)}, {vr(b,2)}, {vr(d,2)} op_sel:[1,1,0] op_sel_hi:[1,0,1] neg_lo:[1,0,0]")


_lbl = [0]
STAMPS = [False]
OPT = set()
WS_ST = 0xC00000


def stamp(A, i):
    if STAMPS[0] and not (i == 10 and "entry" in OPT):
        A(f"s_memrealtime s[{78+2*i}:{79+2*i}]")


def stamp_flush(A):
    if STAMPS[0]:
        A("s_waitcnt vmcnt(0) lgkmcnt(0)")
        A("s_memrealtime s[100:101]")
        A("s_waitcnt lgkmcnt(0)")
        A("s_lshl_b32 s8, s2, 3")
        A("s_add_u32 s8, s8, s3")
        A("s_lshl_b32 s8, s8, 6")
        A(f"s_add_u32 s8, s8, {WS_ST}")
        A("v_mov_b32 v0, 0")
        A("s_mov_b64 exec, 1")
        for i in range(12):
            A(f"v_mov_b32 v1, s{78+2*i}")
            A(f"buffer_store_dword v1, v0, s[56:59], s8 offen offset:{4*i}")
        A("s_waitcnt vmcnt(0)")


def lab(p):
    _lbl[0] += 1
    return f"L{p}_{_lbl[0]}"


def get_nonce(A, vt, vz, sN, stmp):
    l0, l1 = lab("nn"), lab("nd")
    A(f"v_mov_b32 {vr(vz)}, 0")
    A(f"s_mov_b32 s{stmp}, 0")
    A(f"{l0}:")
    A(f"global_load_dword {vr(vt)}, {vr(vz)}, s[42:43] sc1")
    A("s_waitcnt vmcnt(0)")
    A(f"v_readfirstlane_b32 s{sN}, {vr(vt)}")
    A(f"s_add_u32 s{stmp}, s{stmp}, 1")
    A(f"s_cmp_lg_u32 s{sN}, 0")
    A(f"s_cbranch_scc1 {l1}")
    A("s_sleep 1")
    A(f"s_cmp_lt_u32 s{stmp}, {SPIN_MAX}")
    A(f"s_cbranch_scc1 {l0}")
    A(f"{l1}:")
    A.vm = []


def poll_flags(A, vaddrs, vts, srd_s, soff, sN, stmp):
    l0, l1 = lab("pl"), lab("pd")
    A(f"s_mov_b32 s{stmp}, 0")
    A(f"{l0}:")
    for va, vt in zip(vaddrs, vts):
        A(f"buffer_load_dword {vr(vt)}, {vr(va)}, s[{srd_s}:{srd_s+3}], {soff} offen sc1")
    A("s_waitcnt vmcnt(0)")
    A(f"v_cmp_ne_u32 vcc, s{sN}, {vr(vts[0])}")
    if len(vts) > 1:
        A("s_mov_b64 s[70:71], vcc")
        A(f"v_cmp_ne_u32 vcc, s{sN}, {vr(vts[1])}")
        A("s_or_b64 vcc, vcc, s[70:71]")
    A(f"s_add_u32 s{stmp}, s{stmp}, 1")
    A("s_cmp_eq_u64 vcc, 0")
    A(f"s_cbranch_scc1 {l1}")
    A("s_sleep 1")
    A(f"s_cmp_lt_u32 s{stmp}, {SPIN_MAX}")
    A(f"s_cbranch_scc1 {l0}")
    A(f"{l1}:")
    A.vm = []


RAWU = KB + 128


def role_A(A, dbg):
    END = "L_end"
    A("s_sub_u32 s4, s2, 128")
    A("s_and_b32 s6, s4, 7")
    A("s_mul_i32 s5, s6, 14")
    A("s_lshr_b32 s7, s4, 3")
    A("s_add_u32 s5, s5, s7")
    A("s_lshl_b32 s8, s5, 11")
    A("v_lshl_add_u32 v5, v0, 2, s8")
    A("s_waitcnt lgkmcnt(0)")
    RAW = 10
    stamp(A, 0)
    for i in range(6):
        A.vmem(f"global_load_dword v{RAW+i}, v5, s[{18+2*i}:{19+2*i}]", "par")
    A("s_lshl_b32 s8, s5, 3")
    A("s_load_dwordx2 s[10:11], s[30:31], s8")
    A("s_load_dwordx2 s[12:13], s[32:33], s8")
    srd(A, 48, 16, 1835008)
    srd(A, 52, 36, 1204224)
    srd(A, 56, 44, WS_SIZE)
    srd(A, 60, 38, 401408)
    srd(A, 64, 40, 3670016)
    l = lab("nonce")
    A("s_or_b32 s8, s4, s3")
    A("s_cmp_lg_u32 s8, 0")
    A(f"s_cbranch_scc1 {l}")
    A("s_memrealtime s[8:9]")
    A("v_mov_b32 v6, 0")
    A("s_waitcnt lgkmcnt(0)")
    A("s_or_b32 s8, s8, 1")
    A("v_mov_b32 v7, s8")
    A("s_mov_b64 exec, 1")
    A("global_store_dword v6, v7, s[42:43] sc0 sc1")
    A("s_mov_b64 exec, -1")
    A(f"{l}:")
    l = lab("init")
    A("s_cmp_ge_u32 s4, 16")
    A(f"s_cbranch_scc1 {l}")
    A("s_cmp_lg_u32 s3, 7")
    A(f"s_cbranch_scc1 {l}")
    for i in range(4):
        A(f"v_mov_b32 v{20+i}, 0")
    A("v_lshlrev_b32 v6, 4, v1")
    A("s_lshl_b32 s8, s4, 12")
    A(f"s_add_u32 s8, s8, {WS_KV}")
    for i in range(4):
        A(f"buffer_store_dwordx4 v[20:23], v6, s[56:59], s8 offen offset:{1024*i} sc0 sc1")
    A(f"{l}:")
    if "noA" in OPT:
        l2 = lab("ini")
        A("s_cmp_ge_u32 s4, 16")
        A(f"s_cbranch_scc1 {l2}")
        A("s_cmp_lg_u32 s3, 7")
        A(f"s_cbranch_scc1 {l2}")
        A("s_waitcnt vmcnt(0)")
        A("v_mov_b32 v6, 0")
        A("v_mov_b32 v7, 1")
        A("s_mov_b64 exec, 1")
        A("global_atomic_add v6, v7, s[42:43] offset:4")
        A("s_mov_b64 exec, -1")
        A(f"{l2}:")
        A(f"s_branch {END}")
        return
    A("s_lshl_b32 s8, s7, 3")
    A("s_add_u32 s8, s8, s3")
    A("v_lshlrev_b32 v6, 7, v1")
    A("s_lshl_b32 s9, s8, 13")
    l, l2 = lab("tw"), lab("tj")
    A("s_cmp_ge_u32 s8, 63")
    A(f"s_cbranch_scc1 {l}")
    A(f"s_add_u32 s9, s9, {256*2688}")
    A("buffer_load_dword v16, v6, s[52:55], s9 offen")
    A(f"s_branch {l2}")
    A(f"{l}:")
    A(f"s_sub_u32 s9, s9, {63*8192}")
    A("buffer_load_dword v16, v6, s[60:63], s9 offen")
    A(f"{l2}:")
    A.vm.append("touch")
    UR = 172
    A("v_mul_u32_u24 v6, 896, v1")
    A(f"s_mul_i32 s8, s3, {256*896}")
    A("s_lshl_b32 s9, s5, 3")
    A("s_add_u32 s8, s8, s9")
    for i in range(4):
        A(f"s_add_u32 s9, s8, {64*896*i}")
        A.vmem(f"buffer_load_dwordx2 {vr(UR+2*i,2)}, v6, s[48:51], s9 offen", "u")

    A("s_lshr_b32 s14, s3, 1")
    A("s_and_b32 s15, s3, 1")
    A(f"s_mul_i32 s72, s3, {TABW}")
    A("v_and_b32 v2, 15, v1")
    A("v_lshrrev_b32 v3, 4, v1")
    A("v_mul_u32_u24 v4, 288, v2")
    A("v_lshl_add_u32 v4, v3, 4, v4")
    A("v_add_u32 v4, s72, v4")
    A("v_mov_b32 v9, 0x3f80")
    T0, T1, T2 = 160, 164, 168
    for i in range(12):
        A(f"v_mov_b32 v{160+i}, 0")
    A("s_waitcnt lgkmcnt(0)")
    A("s_lshl_b32 s8, s14, 4")
    A("s_lshr_b64 s[10:11], s[10:11], s8")
    A("s_lshl_b32 s10, s10, 16")
    A("s_lshr_b64 s[12:13], s[12:13], s8")
    A("s_lshl_b32 s69, s12, 16")
    A(f"v_mov_b32 v6, {LOG2E}")
    A("v_mul_f32 v6, s10, v6")
    A("v_exp_f32 v6, v6")
    A("v_cvt_pk_bf16_f32 v6, v6, v6")
    A("v_lshlrev_b32 v6, 16, v6")
    A("v_readfirstlane_b32 s68, v6")
    A("s_mov_b32 s73, 0")
    A("s_mov_b32 m0, s72")
    A.wait_vm("par")
    stamp(A, 1)
    LP = lab("pass")
    A(f"{LP}:")
    E1, E2, E4, E8, Y1, E256, W = 20, 22, 24, 26, 28, 30, 32
    Y = {1: 28, 2: 34, 3: 36, 4: 38, 5: 40, 6: 42, 7: 44, 8: 46}
    X0 = {0: W}
    for i in range(1, 16):
        X0[i] = 54 + 2 * i
    YF, XF, XG = 112, 128, 144
    cv = [104]

    def cvt_write(src, row, neg=False):
        r = cv[0]
        cv[0] = 104 + (cv[0] - 104 + 1) % 8
        A(f"v_cvt_pk_bf16_f32 v{r}, v{src}, {'-' if neg else ''}v{src+1}")
        A(f"ds_write_addtid_b32 v{r} offset:{288*row}")

    def read_frags(base):
        for s in range(4):
            A(f"ds_read_b128 {vr(base+4*s,4)}, v4 offset:{64*s}")

    U = 86
    for i in range(6):
        A(f"v_lshlrev_b32 v{U+i}, 16, v{RAW+i}")
    A(f"v_mul_f32 v{U}, s68, v{U}")
    A(f"v_mul_f32 v{U+1}, s68, v{U+1}")
    A(f"v_mul_f32 v{U+2}, s68, v{U+2}")
    A(f"v_mul_f32 v{U+3}, s68, v{U+3}")
    A(f"v_mul_f32 v{U+6}, {LOG2E}, v{U}")
    A(f"v_mul_f32 v{U+7}, {INV2PI}, v{U+1}")
    A(f"s_mov_b32 s8, {INV2PI}")
    A(f"v_fma_f32 v{U+8}, v{U+1}, s8, -v{U+7}")
    A(f"v_fmac_f32 v{U+8}, {INV2PI_LO}, v{U+1}")
    cmul(A, W, U + 4, U + 2)
    anch = [(16, Y1, 48), (1, E1, 52), (256, E256, 98)]
    fa = {16: 0x41800000, 1: None, 256: 0x43800000}
    for (a, d, t) in anch:
        if a == 1:
            A(f"v_exp_f32 v{t}, v{U+6}")
            A(f"v_fract_f32 v{t+1}, v{U+7}")
        else:
            A(f"v_mul_f32 v{t}, {fa[a]}, v{U+6}")
            A(f"v_mul_f32 v{t+1}, {fa[a]}, v{U+7}")
            A(f"v_exp_f32 v{t}, v{t}")
            A(f"v_fract_f32 v{t+1}, v{t+1}")
            if a == 256:
                A(f"v_fmac_f32 v{t+1}, {fa[a]}, v{U+8}")
    for (a, d, t) in anch:
        A(f"v_cos_f32 v{t+2}, v{t+1}")
        A(f"v_sin_f32 v{t+3}, v{t+1}")
    for (a, d, t) in anch:
        A(f"v_pk_mul_f32 {vr(d,2)}, {vr(t+2,2)}, {vr(t,2)} op_sel_hi:[1,0]")
    A("ds_write_addtid_b32 v9 offset:0")
    cmul_many(A, [(Y[2], Y1, Y1), (E2, E1, E1), (X0[1], W, E1)])
    cvt_write(Y1, 1, True)
    cmul_many(A, [(Y[3], Y[2], Y1), (Y[4], Y[2], Y[2]), (E4, E2, E2), (X0[2], W, E2), (X0[3], X0[1], E2)])
    cvt_write(Y[2], 2, True)
    cmul_many(A, [(Y[5], Y1, Y[4]), (Y[6], Y[2], Y[4]), (Y[7], Y[3], Y[4]), (Y[8], Y[4], Y[4]), (E8, E4, E4)])
    cvt_write(Y[3], 3, True)
    cvt_write(Y[4], 4, True)
    tmpY = [48, 50, 52, 98, 100, 102, 86]
    cmul_many(A, [(tmpY[j - 9], Y[j - 8], Y[8]) for j in range(9, 13)])
    for j in range(5, 9):
        cvt_write(Y[j], j, True)
    cmul_many(A, [(tmpY[j - 9], Y[j - 8], Y[8]) for j in range(13, 16)])
    for j in range(9, 13):
        cvt_write(tmpY[j - 9], j, True)
    cmul_many(A, [(X0[4 + i], X0[i], E4) for i in range(4)])
    for j in range(13, 16):
        cvt_write(tmpY[j - 9], j, True)
    read_frags(YF)
    cmul_many(A, [(X0[8 + i], X0[i], E8) for i in range(4)])
    for i in range(0, 4):
        cvt_write(X0[i], i)
    cmul_many(A, [(X0[12 + i], X0[4 + i], E8) for i in range(4)])
    for i in range(4, 16):
        cvt_write(X0[i], i)
    read_frags(XF)

    l = lab("exp")
    A(";FLUSH")
    A("s_cmp_eq_u32 s73, 0")
    A(f"s_cbranch_scc1 {l}")
    stamp(A, 4)
    A("v_lshlrev_b32 v5, 8, v3")
    A("v_and_b32 v6, 3, v1")
    A("v_lshl_add_u32 v5, v6, 6, v5")
    A("v_bfe_u32 v7, v1, 2, 2")
    A("v_lshl_add_u32 v5, v7, 3, v5")
    A("s_lshl_b32 s8, s3, 11")
    A(f"s_sub_u32 s8, {RAWU + 8*2047 - 1024 - 32 - 24}, s8")
    A("v_sub_u32 v5, s8, v5")
    A("v_lshrrev_b32 v7, 2, v1")
    A("v_lshlrev_b32 v7, 6, v7")
    A("s_lshl_b32 s8, s3, 11")
    A(f"s_add_u32 s8, s8, {UT}")
    A("v_add_u32 v7, s8, v7")
    for s in range(4):
        A(f"v_xor_b32 v8, {s}, v6")
        A(f"v_lshl_add_u32 v{UR+s}, v8, 4, v7")
    A("s_barrier")
    EX = 180
    for j in range(2):
        for s in range(4):
            for u in range(2):
                A(f"ds_read_b64_tr_b16 {vr(EX+16*j+4*s+2*u,2)}, v5 offset:{1024+32+24 - 1024*j - 32*u - 8*s}")
        if j == 0:
            pass
    for j in range(2):
        for s in range(4):
            k = 7 - (4 * j + s)
            A(f"s_waitcnt lgkmcnt({min(15, 2*k + (4*j+s))})")
            A(f"ds_write_b128 v{UR+s}, {vr(EX+16*j+4*s,4)} offset:{s*CS + 1024*j}")
    stamp(A, 5)
    A(";FLUSH")
    A(f"{l}:")

    X1 = [34 + 2 * i for i in range(8)]
    X2a = [86 + 2 * i for i in range(4)]
    X2b = [94 + 2 * i for i in range(4)]
    cmul_many(A, [(X1[i], X0[2 * i], E256) for i in range(4)])
    cmul_many(A, [(X1[i], X0[2 * i], E256) for i in range(4, 8)])
    cmul_many(A, [(X2a[t], X1[2 * t], E256) for t in range(4)])
    cmul_many(A, [(X2b[t], X2a[t], E256) for t in range(4)])
    A("s_waitcnt lgkmcnt(0)")
    rows1 = X1 + X2a + X2b
    for s in range(4):
        A(f"v_mfma_f32_16x16x32_bf16 {vr(T0,4)}, {vr(XF+4*s,4)}, {vr(YF+4*s,4)}, {vr(T0,4)}")
        for i in range(4 * s, 4 * s + 4):
            cvt_write(rows1[i], i)
    read_frags(XG)
    X3 = [56 + 2 * i for i in range(9)]
    cmul_many(A, [(X3[0], X2b[0], E256), (X3[1], X2b[2], E256)])
    cmul_many(A, [(X3[2], X3[0], E256), (X3[3], X3[1], E256)])
    cmul_many(A, [(X3[4], X3[2], E256), (X3[5], X3[3], E256)])
    cmul_many(A, [(X3[6], X3[4], E256), (X3[7], X3[5], E256)])
    cmul_many(A, [(X3[8], X3[6], E256)])
    A("s_waitcnt lgkmcnt(0)")
    for s in range(4):
        A(f"v_mfma_f32_16x16x32_bf16 {vr(T1,4)}, {vr(XG+4*s,4)}, {vr(YF+4*s,4)}, {vr(T1,4)}")
        for i in range(9):
            if i % 4 == s:
                cvt_write(X3[i], i)
    read_frags(XF)
    for i in range(6):
        A(f"v_lshrrev_b32 v{RAW+i}, 16, v{RAW+i}")

    l = lab("raw")
    A(";FLUSH")
    A("s_cmp_lg_u32 s73, 0")
    A(f"s_cbranch_scc1 {l}")
    stamp(A, 2)
    A("s_lshl_b32 s8, s3, 11")
    A(f"s_add_u32 s8, s8, {RAWU}")
    A("v_lshl_add_u32 v5, v1, 3, s8")
    A("v_mov_b32 v6, 0")
    A("v_mov_b32 v7, 0")
    A(f"s_mul_i32 s9, s3, {CS}")
    A(f"s_add_u32 s9, s9, {UT + 16384}")
    A("s_cmp_lt_u32 s3, 4")
    A(f"s_cselect_b32 s9, s9, {KB}")
    A("v_lshl_add_u32 v8, v2, 3, s9")
    A("ds_write_b64 v8, v[6:7]")
    A.wait_vm_all()
    for i in range(4):
        A(f"ds_write_b64 v5, {vr(UR+2*i,2)} offset:{512*i}")
    l2 = lab("ini")
    A("s_cmp_ge_u32 s4, 16")
    A(f"s_cbranch_scc1 {l2}")
    A("s_cmp_lg_u32 s3, 7")
    A(f"s_cbranch_scc1 {l2}")
    A("v_mov_b32 v7, 1")
    A("s_mov_b64 exec, 1")
    A("global_atomic_add v6, v7, s[42:43] offset:4")
    A("s_mov_b64 exec, -1")
    A(f"{l2}:")
    stamp(A, 3)
    A(";FLUSH")
    A(f"{l}:")
    A("s_waitcnt lgkmcnt(0)")
    for s in range(4):
        A(f"v_mfma_f32_16x16x32_bf16 {vr(T2,4)}, {vr(XF+4*s,4)}, {vr(YF+4*s,4)}, {vr(T2,4)}")
    A("s_add_u32 s73, s73, 1")
    A("s_cmp_lt_u32 s73, 2")
    A(f"s_cbranch_scc1 {LP}")
    stamp(A, 6)

    A("v_lshl_add_u32 v5, v1, 4, s72")
    A(f"s_xor_b32 s8, s3, 1")
    A(f"s_mul_i32 s8, s8, {TABW}")
    A("v_lshl_add_u32 v6, v1, 4, s8")
    A(f"s_mul_i32 s9, s14, {KBW}")
    A(f"s_add_u32 s9, s9, {KB + 512}")
    A("v_lshlrev_b32 v7, 5, v2")
    A("v_sub_u32 v52, 15, v2")
    A("v_and_b32 v53, 3, v52")
    A("v_lshrrev_b32 v52, 2, v52")
    A("v_lshl_add_u32 v52, v3, 1, v52")
    A(f"v_mul_u32_u24 v54, {CS}, v53")
    A("v_xor_b32 v53, s14, v53")
    A("v_lshl_add_u32 v54, v53, 4, v54")
    A(f"v_add_u32 v54, {UT + 7*256}, v54")
    for u in range(2):
        if u:
            A("v_add_u32 v52, 1, v52")
        A("v_lshrrev_b32 v53, 1, v52")
        A("v_lshl_add_u32 v55, v53, 6, v54")
        A("v_and_b32 v53, 1, v52")
        A(f"v_lshl_add_u32 v{60+u}, v53, 3, v55")
    A("v_lshlrev_b32 v62, 5, v2")
    A("v_lshl_add_u32 v62, v3, 4, v62")
    A("s_sub_u32 s8, s9, 32")
    A("v_add_u32 v62, s8, v62")
    A("v_lshlrev_b32 v52, 2, v2")
    A("v_add_u32 v52, v52, v3")
    A("v_sub_u32 v52, 63, v52")
    A("v_lshrrev_b32 v53, 1, v52")
    A("v_lshlrev_b32 v53, 6, v53")
    A("v_and_b32 v52, 1, v52")
    A("v_lshl_add_u32 v53, v52, 3, v53")
    A("s_lshl_b32 s8, s14, 4")
    A(f"s_add_u32 s8, s8, {UT}")
    A("v_add_u32 v63, s8, v53")
    ACC = 64
    for i in range(16):
        A(f"v_mov_b32 v{ACC+i}, 0")
    A(";FLUSH")
    LH1, LJ = lab("h1"), lab("kj")
    A("s_cmp_lg_u32 s15, 0")
    A(f"s_cbranch_scc1 {LH1}")
    A(f"ds_write_b128 v5, {vr(T1,4)}")
    A(f"ds_write_b128 v5, {vr(T2,4)} offset:1024")
    A("v_lshl_add_u32 v7, v3, 3, v7")
    A("v_add_u32 v7, s9, v7")
    A("s_sub_u32 s8, s9, 512")
    A("v_lshl_add_u32 v8, v1, 3, s8")
    A("v_mov_b32 v26, 0")
    A("v_mov_b32 v27, 0")
    A("s_waitcnt lgkmcnt(0)")
    A("s_barrier")
    A("ds_read_b128 v[20:23], v6")
    A("ds_write_b64 v8, v[26:27]")
    A("s_waitcnt lgkmcnt(1)")
    A(f"v_pk_add_f32 v[20:21], v[20:21], {vr(T0,2)}")
    A(f"v_pk_add_f32 v[22:23], v[22:23], {vr(T0+2,2)}")
    A("v_cvt_pk_bf16_f32 v24, v20, v21")
    A("v_cvt_pk_bf16_f32 v25, v22, v23")
    A("ds_write_b64 v7, v[24:25]")
    A(f"s_branch {LJ}")
    A(f"{LH1}:")
    A(f"ds_write_b128 v5, {vr(T0,4)}")
    A("v_add_u32 v7, s9, v7")
    A("v_lshl_add_u32 v8, v3, 10, v7")
    A("v_lshl_add_u32 v28, v3, 9, v7")
    A("v_subrev_u32 v28, 4, v28")
    A("v_lshl_add_u32 v29, v3, 4, v7")
    A("s_waitcnt lgkmcnt(0)")
    A("s_barrier")
    A("ds_read_b128 v[24:27], v6 offset:1024")
    A("ds_read_b128 v[20:23], v6")
    A("s_waitcnt lgkmcnt(1)")
    A(f"v_pk_add_f32 v[24:25], v[24:25], {vr(T2,2)}")
    A(f"v_pk_add_f32 v[26:27], v[26:27], {vr(T2+2,2)}")
    for hh in range(2):
        a0, a8 = 24 + 2 * hh, 25 + 2 * hh
        b = 30 + 6 * hh
        A(f"v_cvt_pk_bf16_f32 v{b}, v{a0}, v{a0}")
        A(f"v_cvt_pk_bf16_f32 v{b+1}, v{a0}, v{a0}")
        A(f"v_cvt_pk_bf16_f32 v{b+2}, v{a0}, v{a8}")
        A(f"v_cvt_pk_bf16_f32 v{b+3}, v{a8}, v{a8}")
        A(f"v_cvt_pk_bf16_f32 v{b+4}, v{a8}, v{a8}")
        A(f"v_cvt_pk_bf16_f32 v{b+5}, v{a8}, v{a8}")
    o3 = 2048 - 8
    A("s_mov_b32 exec_hi, 1")
    A(f"ds_write_b64 v8, v[30:31] offset:{o3}")
    A("s_mov_b32 exec_hi, 0")
    A(f"ds_write_b64 v8, v[30:31] offset:{o3+8}")
    A(f"ds_write_b64 v8, v[32:33] offset:{o3+16}")
    A(f"ds_write_b64 v8, v[34:35] offset:{o3+24}")
    A(f"ds_write_b64 v8, v[36:37] offset:{o3+512}")
    A(f"ds_write_b64 v8, v[36:37] offset:{o3+512+8}")
    A(f"ds_write_b64 v8, v[38:39] offset:{o3+512+16}")
    A(f"ds_write_b64 v8, v[40:41] offset:{o3+512+24}")
    A("s_mov_b32 exec_hi, -1")
    A("s_waitcnt lgkmcnt(8)")
    A(f"v_pk_add_f32 v[20:21], v[20:21], {vr(T1,2)}")
    A(f"v_pk_add_f32 v[22:23], v[22:23], {vr(T1+2,2)}")
    A("v_cvt_pk_bf16_f32 v42, v20, v20")
    A("v_cvt_pk_bf16_f32 v43, v20, v21")
    A("v_cvt_pk_bf16_f32 v44, v21, v21")
    A("v_cvt_pk_bf16_f32 v45, v22, v22")
    A("v_cvt_pk_bf16_f32 v46, v22, v22")
    A("v_cvt_pk_bf16_f32 v47, v22, v23")
    A("v_cvt_pk_bf16_f32 v48, v23, v23")
    A("v_cvt_pk_bf16_f32 v50, v20, v20")
    A("v_cvt_pk_bf16_f32 v51, v21, v22")
    A("s_mov_b32 exec_lo, 0")
    A("ds_write_b32 v28, v42")
    A("ds_write_b64 v28, v[42:43] offset:4")
    A("ds_write_b64 v28, v[44:45] offset:12")
    A("ds_write_b64 v28, v[46:47] offset:20")
    A("ds_write_b32 v28, v48 offset:28")
    A("s_mov_b32 exec_lo, -2")
    A("s_mov_b32 exec_hi, 0")
    A("ds_write_b16 v29, v50 offset:510")
    A("s_mov_b32 exec_lo, -1")
    A("ds_write_b64 v29, v[50:51] offset:512")
    A("ds_write_b32 v29, v45 offset:520")
    A("ds_write_b16 v29, v48 offset:524")
    A("s_mov_b64 exec, -1")
    A(f"{LJ}:")

    FS = [(80, 112), (144, 176)]
    A("s_mov_b32 s73, 0")
    A("s_waitcnt lgkmcnt(0)")
    stamp(A, 7)
    A("s_barrier")
    stamp(A, 8)
    if dbg:
        A("v_lshlrev_b32 v5, 4, v0")
        A(f"s_mul_i32 s8, s5, 18432")
        A(f"s_add_u32 s8, s8, {WS_DBG}")
        for i in range(3):
            A(f"v_add_u32 v6, {KB + 8192*i}, v5")
            A("ds_read_b128 v[104:107], v6")
            A("s_waitcnt lgkmcnt(0)")
            if i == 2:
                A("v_cmp_gt_u32 vcc, 2048, v5")
                A("s_and_saveexec_b64 s[10:11], vcc")
            A(f"s_add_u32 s9, s8, {8192*i}")
            A("buffer_store_dwordx4 v[104:107], v5, s[56:59], s9 offen")
            A("s_waitcnt vmcnt(0)")
        A("s_mov_b64 exec, -1")
    LC1, LCJ = lab("c1"), lab("cj")
    A("s_cmp_lg_u32 s15, 0")
    A(f"s_cbranch_scc1 {LC1}")
    for hf, tiles in ((0, (0, 3, 4, 7)), (1, (1, 2, 5, 6))):
        if hf:
            A(f"{LC1}:")
        tmax = max(tiles)
        jobs = [(t, c1, t - c1) for t in tiles for c1 in range(t + 1)]
        jobs.sort(key=lambda j: (max(j[1], j[2]), j[0]))
        issue = []
        for k in range(tmax + 1):
            issue += [("A", k, 0), ("A", k, 1), ("B", k)]

        def emit_issue(it, fs, dc):
            if it[0] == "A":
                A(f"ds_read_b64 {vr(fs[0]+4*it[1]+2*it[2],2)}, v{60+it[2]} offset:{(7-it[1])*2048 + 256*(1-dc)}")
            else:
                A(f"ds_read_b128 {vr(fs[1]+4*it[1],4)}, v62 offset:{512*it[1] + 64*(1-dc)}")
        A("v_subrev_u32 v60, 256, v60")
        A("v_subrev_u32 v61, 256, v61")
        A("v_subrev_u32 v62, 64, v62")
        for it in issue:
            emit_issue(it, FS[0], 0)
        LL = lab("cv")
        A(f"{LL}:")
        for half in range(2):
            cur, nxt = FS[half], FS[1 - half]
            A("s_waitcnt lgkmcnt(0)")
            if half == 1:
                A("v_subrev_u32 v60, 512, v60")
                A("v_subrev_u32 v61, 512, v61")
                A("v_subrev_u32 v62, 128, v62")
            pend = list(issue)
            nj = len(jobs)
            per = -(-len(pend) // (nj - 2))
            for ji, (t, c1, dl) in enumerate(jobs):
                ai = ACC + 4 * tiles.index(t)
                A(f"v_mfma_f32_16x16x32_bf16 {vr(ai,4)}, {vr(cur[0]+4*c1,4)}, {vr(cur[1]+4*dl,4)}, {vr(ai,4)}")
                for _ in range(per):
                    if pend:
                        emit_issue(pend.pop(0), nxt, 1 if half == 0 else 0)
            assert not pend
        A("s_add_u32 s73, s73, 1")
        A("s_cmp_lt_u32 s73, 4")
        A(f"s_cbranch_scc1 {LL}")
        AF, BF = 144, 176
        for i, t in enumerate(tiles):
            A(f"ds_read_b64 {vr(AF+2*i,2)}, v63 offset:{(7-t)*2048}")
        A(f"s_mul_i32 s8, s14, {YP}")
        A("v_lshl_add_u32 v5, v1, 3, s8")
        A("s_waitcnt lgkmcnt(0)")
        for i, t in enumerate(tiles):
            ai = ACC + 4 * i
            d0, d1 = AF + 2 * i, AF + 2 * i + 1
            b = BF + 4 * i
            A(f"v_and_b32 v{b}, 0xffff0000, v{d1}")
            A(f"v_lshlrev_b32 v{b+1}, 16, v{d1}")
            A(f"v_and_b32 v{b+2}, 0xffff0000, v{d0}")
            A(f"v_lshlrev_b32 v{b+3}, 16, v{d0}")
            for j in range(4):
                A(f"v_fma_f32 v{b+j}, v{b+j}, s69, v{ai+j}")
            A(f"v_cvt_pk_bf16_f32 v{d0}, v{b}, v{b+1}")
            A(f"v_cvt_pk_bf16_f32 v{d1}, v{b+2}, v{b+3}")
            A(f"ds_write_b64 v5, {vr(d0,2)} offset:{512*t}")
        if hf == 0:
            A(f"s_branch {LCJ}")
    A(f"{LCJ}:")
    stamp(A, 9)
    A("v_bfe_u32 v5, v1, 2, 2")
    A(f"v_mul_u32_u24 v5, {YP}, v5")
    A("v_and_b32 v6, 3, v1")
    A("v_lshl_add_u32 v5, v6, 7, v5")
    A("v_lshl_add_u32 v5, v3, 3, v5")
    A("s_lshl_b32 s8, s3, 9")
    A("v_add_u32 v5, s8, v5")
    A("v_mul_u32_u24 v6, 1792, v1")
    A(f"s_mul_i32 s8, s3, {256*1792}")
    A("s_lshl_b32 s9, s5, 3")
    A("s_add_u32 s8, s8, s9")
    A("s_waitcnt lgkmcnt(0)")
    A("s_barrier")
    for i in range(4):
        A(f"ds_read_b64_tr_b16 {vr(40+2*i,2)}, v5 offset:{32*i}")
    for i in range(4):
        A(f"s_add_u32 s9, s8, {64*1792*i}")
        A(f"s_waitcnt lgkmcnt({3-i})")
        A(f"buffer_store_dwordx2 {vr(40+2*i,2)}, v6, s[64:67], s9 offen")
    stamp(A, 10)
    stamp_flush(A)
    A(f"s_branch {END}")


SLOT = 40960
WO_BASE = [3 * SLOT, 0]
SCR = SLOT
KVL = SLOT
XCH_TAB = [32768, 36864, 106496, 110592, 114688, 118784, 155648, 159744]


def phi_block(A, acc, tmp, dst, n=16):
    for i in range(n):
        A(f"v_mul_f32 v{tmp+i}, {LOG2E}, v{acc+i}")
        A(f"v_min_f32 v{tmp+i}, 0, v{tmp+i}")
    for i in range(n):
        A(f"v_exp_f32 v{tmp+i}, v{tmp+i}")
        A(f"v_add_f32 v{acc+i}, 1.0, v{acc+i}")
    for i in range(n):
        A(f"v_max_f32 v{tmp+i}, v{tmp+i}, v{acc+i}")
        A(f"v_add_f32 v{tmp+i}, {F1EM6}, v{tmp+i}")
    for i in range(n // 2):
        A(f"v_cvt_pk_bf16_f32 v{dst+i}, v{tmp+2*i}, v{tmp+2*i+1}")


def xch_addr(A, sdst, swave, st):
    A(f"s_lshl_b32 s{sdst}, s{swave}, 12")
    A(f"s_mov_b32 s{st}, {XCH_TAB[2] - 8192}")
    A(f"s_cmp_lt_u32 s{swave}, 2")
    A(f"s_cselect_b32 s{st}, {XCH_TAB[0]}, s{st}")
    A(f"s_cmp_ge_u32 s{swave}, 6")
    A(f"s_cselect_b32 s{st}, {XCH_TAB[6] - 6*4096}, s{st}")
    A(f"s_add_u32 s{sdst}, s{sdst}, s{st}")


def role_B(A, dbg):
    END = "L_end"
    A("s_and_b32 s4, s2, 7")
    A("s_lshl_b32 s4, s4, 1")
    A("s_bfe_u32 s8, s2, 0x10003")
    A("s_or_b32 s4, s4, s8")
    A("s_lshr_b32 s5, s2, 4")
    A("s_and_b32 s6, s3, 3")
    A("s_lshr_b32 s7, s3, 2")
    A("v_lshrrev_b32 v8, 3, v1")
    A("v_and_b32 v9, 7, v1")
    A("v_lshrrev_b32 v10, 4, v1")
    A("s_lshl_b32 s8, s4, 7")
    A("s_lshl_b32 s9, s3, 4")
    A("s_add_u32 s8, s8, s9")
    A("v_add_u32 v11, s8, v8")
    A("v_mul_u32_u24 v11, 896, v11")
    A("v_xor_b32 v12, v9, v10")
    A("v_lshl_add_u32 v20, v12, 4, v11")
    A("v_xor_b32 v12, 4, v12")
    A("v_lshl_add_u32 v21, v12, 4, v11")
    A(f"v_add_u32 v21, {8*896}, v21")
    A("v_and_b32 v12, 1, v10")
    A("v_lshlrev_b32 v12, 2, v12")
    A("v_xor_b32 v12, v9, v12")
    A("v_lshlrev_b32 v12, 4, v12")
    A("s_lshl_b32 s8, s3, 3")
    A("v_add_u32 v13, s8, v8")
    A("v_mul_u32_u24 v14, 2688, v13")
    A("v_add_u32 v14, v14, v12")
    A("s_mul_i32 s8, s5, 112")
    A("v_add_u32 v22, s8, v14")
    A("v_mul_u32_u24 v14, 896, v13")
    A("v_add_u32 v14, v14, v12")
    A("s_lshl_b32 s8, s5, 7")
    A("v_add_u32 v23, s8, v14")
    A("s_lshl_b32 s12, s3, 11")
    A("s_lshl_b32 s13, s3, 10")
    A("s_waitcnt lgkmcnt(0)")
    srd(A, 48, 34, 1835008)
    srd(A, 52, 36, 1204224)
    stamp(A, 0)

    def issue_stage(i):
        sb = (i % 4) * SLOT
        for j in range(2):
            A(f"s_add_u32 m0, s12, {sb + j*1024}")
            A(f"s_movk_i32 s8, {i*128}")
            A.vmem(f"buffer_load_dwordx4 v{20+j}, s[48:51], s8 offen lds", ("st", i))
        for m, mo in ((0, 896), (1, 1792), (2, 0)):
            A(f"s_add_u32 m0, s13, {sb + 16384 + m*8192}")
            A(f"s_mov_b32 s8, {i*64*2688 + mo}")
            A.vmem(f"buffer_load_dwordx4 v22, s[52:55], s8 offen lds", ("st", i))

    def issue_wo(p):
        for i in range(4):
            A(f"s_add_u32 m0, s13, {WO_BASE[p] + i*8192}")
            A(f"s_mov_b32 s8, {(224*p + 64*i)*896}")
            A.vmem(f"buffer_load_dwordx4 v23, s[60:63], s8 offen lds", "wo")
    issue_stage(0)
    srd(A, 56, 44, WS_SIZE)
    srd(A, 60, 38, 401408)
    srd(A, 64, 40, 3670016)
    A("v_and_b32 v2, 31, v1")
    A("v_lshrrev_b32 v3, 5, v1")
    A("v_bfe_u32 v4, v1, 2, 2")
    A("v_lshl_add_u32 v5, v3, 3, v4")
    A("v_bfe_u32 v6, v1, 4, 1")
    A("v_and_b32 v7, 3, v1")
    A("v_lshlrev_b32 v7, 3, v7")
    A("v_lshl_add_u32 v7, v6, 5, v7")
    A("v_lshrrev_b32 v6, 1, v4")
    A("v_lshlrev_b32 v6, 6, v6")
    A("s_barrier")
    issue_stage(1)
    issue_stage(2)
    issue_stage(3)
    A("v_bfe_u32 v8, v2, 1, 3")
    A("v_xor_b32 v8, v8, v3")
    A("s_lshl_b32 s8, s6, 12")
    A("v_lshl_add_u32 v9, v2, 7, s8")
    for tt in range(4):
        A(f"v_xor_b32 v10, {2*tt}, v8")
        A(f"v_lshl_add_u32 v{24+tt}, v10, 4, v9")
    A("s_mul_i32 s8, s7, 56")
    A("v_add_u32 v8, s8, v7")
    A("v_xor_b32 v8, v8, v6")
    A("v_lshl_add_u32 v28, v5, 7, v8")
    AK, AV, AQ = 32, 48, 64
    for i in range(48):
        A(f"v_mov_b32 v{32+i}, 0")
    FR = [80, 96]
    A("v_mov_b32 v30, 0")

    def reads(tt, fs):
        A(f"ds_read_b128 {vr(fs,4)}, v{24+tt}")
        for m in range(3):
            for u in range(2):
                A(f"ds_read_b64_tr_b16 {vr(fs+4+4*m+2*u,2)}, v28 offset:{16384 + m*8192 + tt*2048 + u*512}")

    def bump(delta):
        for r in range(24, 29):
            if delta > 0:
                A(f"v_add_u32 v{r}, {delta}, v{r}")
            else:
                A(f"v_subrev_u32 v{r}, {-delta}, v{r}")

    A.wait_vm(("st", 0))
    A("s_barrier")
    stamp(A, 1)
    reads(0, FR[0])
    for i in range(7):
        for tt in range(4):
            cur, nxt = FR[tt % 2], FR[(tt + 1) % 2]
            last = (i == 6 and tt == 3)
            if tt < 3:
                reads(tt + 1, nxt)
            elif i < 6:
                bump(SLOT if (i + 1) % 4 else -3 * SLOT)
                reads(0, nxt)
            A(f"s_waitcnt lgkmcnt({0 if last else 7})")
            A(f"v_mfma_f32_32x32x16_bf16 {vr(AK,16)}, {vr(cur,4)}, {vr(cur+4,4)}, {vr(AK,16)}")
            A(f"v_mfma_f32_32x32x16_bf16 {vr(AV,16)}, {vr(cur,4)}, {vr(cur+8,4)}, {vr(AV,16)}")
            A(f"v_mfma_f32_32x32x16_bf16 {vr(AQ,16)}, {vr(cur+12,4)}, {vr(cur,4)}, {vr(AQ,16)}")
            if tt == 1 and i < 6:
                A.wait_vm(("st", i + 1))
                A("s_barrier")
                if 1 <= i <= 3:
                    issue_stage(i + 3)
                if i == 4:
                    issue_wo(0)
                    A.vmem("global_load_dwordx2 v[112:113], v30, s[42:43] sc1", "nonce")
                if i == 5:
                    issue_wo(1)
    stamp(A, 2)
    PK, PV, TMP = 96, 104, 120
    A("v_cmp_eq_u32 vcc, 28, v2")
    A("v_mov_b32 v8, 0x3f803f80")
    phi_block(A, AK, TMP, PK)
    for i in range(8):
        A(f"v_cvt_pk_bf16_f32 v{PV+i}, v{AV+2*i}, v{AV+2*i+1}")
    for i in range(8):
        A(f"v_cndmask_b32 v{PV+i}, v{PV+i}, v8, vcc")
    A("s_lshl_b32 s8, s3, 12")
    A(f"s_add_u32 s8, s8, {SCR}")
    A("v_lshl_add_u32 v8, v1, 4, s8")
    A(f"v_mfma_f32_32x32x16_bf16 {vr(AV,16)}, {vr(PV,4)}, {vr(PK,4)}, 0")
    A(f"v_mfma_f32_32x32x16_bf16 {vr(AV,16)}, {vr(PV+4,4)}, {vr(PK+4,4)}, {vr(AV,16)}")
    A("s_barrier")
    A.wait_vm("nonce")
    A("v_readfirstlane_b32 s74, v112")
    A("v_readfirstlane_b32 s75, v113")
    l0, l1 = lab("nn"), lab("nd")
    A("s_mov_b32 s9, 0")
    A(f"{l0}:")
    A("s_cmp_eq_u32 s74, 0")
    A("s_cselect_b32 s75, 0, s75")
    A("s_cmp_eq_u32 s75, 16")
    A(f"s_cbranch_scc1 {l1}")
    A("global_load_dwordx2 v[112:113], v30, s[42:43] sc1")
    A("s_add_u32 s9, s9, 1")
    A("s_waitcnt vmcnt(0)")
    A("v_readfirstlane_b32 s74, v112")
    A("v_readfirstlane_b32 s75, v113")
    A(f"s_cmp_lt_u32 s9, {SPIN_MAX}")
    A(f"s_cbranch_scc1 {l0}")
    A(f"{l1}:")
    A(";FLUSH")
    for q in range(4):
        A(f"ds_write_b128 v8, {vr(AV+4*q,4)} offset:{1024*q}")
    A("s_waitcnt lgkmcnt(0)")
    A("s_barrier")
    stamp(A, 3)
    LW = lab("w47")
    A("s_cmp_ge_u32 s3, 4")
    A(f"s_cbranch_scc1 {LW}")
    A("s_lshl_b32 s8, s6, 10")
    A(f"s_add_u32 s8, s8, {SCR}")
    A("v_lshl_add_u32 v8, v1, 4, s8")
    for w in range(8):
        A(f"ds_read_b128 {vr(TMP+4*w,4)}, v8 offset:{4096*w}")
    A("v_lshlrev_b32 v9, 2, v2")
    A("v_lshl_add_u32 v9, v3, 9, v9")
    A("s_lshl_b32 s8, s5, 13")
    A("s_lshl_b32 s9, s6, 10")
    A("s_add_u32 s8, s8, s9")
    A(f"s_add_u32 s8, s8, {WS_KV}")
    A("s_add_u32 s9, s8, 4096")
    for hd in range(2):
        b = TMP + 16 * hd
        A(f"s_waitcnt lgkmcnt({4*(1-hd)})")
        for p in range(2):
            A(f"v_pk_add_f32 {vr(b+2*p,2)}, {vr(b+2*p,2)}, {vr(b+4+2*p,2)}")
            A(f"v_pk_add_f32 {vr(b+8+2*p,2)}, {vr(b+8+2*p,2)}, {vr(b+12+2*p,2)}")
        for p in range(2):
            A(f"v_pk_add_f32 {vr(b+2*p,2)}, {vr(b+2*p,2)}, {vr(b+8+2*p,2)}")
        for j in range(4):
            A(f"buffer_atomic_add_f32 v{b+j}, v9, s[56:59], s{8+hd} offen offset:{128*j}")
    A(";FLUSH")
    A(f"{LW}:")
    stamp(A, 4)
    TQ = 152
    phi_block(A, AQ, TQ, PK)
    A("v_cmp_eq_u32 vcc, 0, v3")
    A(f"v_cndmask_b32 v{PK+6}, 0, v{PK+6}, vcc")
    A(f"v_cndmask_b32 v{PK+7}, 0, v{PK+7}, vcc")
    A("v_lshlrev_b32 v8, 4, v1")
    A("s_lshl_b32 s8, s4, 2")
    A("s_add_u32 s8, s8, s6")
    A("s_lshl_b32 s8, s8, 4")
    A("s_lshl_b32 s9, s5, 1")
    A("s_add_u32 s8, s8, s9")
    A("s_add_u32 s8, s8, s7")
    A("s_lshl_b32 s8, s8, 11")
    A(f"s_add_u32 s8, s8, {WS_PQ}")
    A(f"buffer_store_dwordx4 {vr(PK,4)}, v8, s[56:59], s8 offen sc0 sc1")
    A(f"buffer_store_dwordx4 {vr(PK+4,4)}, v8, s[56:59], s8 offen offset:1024 sc0 sc1")
    stamp(A, 5)
    A("v_lshrrev_b32 v8, 3, v1")
    A("v_and_b32 v9, 7, v1")
    A("v_lshrrev_b32 v10, 4, v1")
    A("v_xor_b32 v10, v9, v10")
    A("v_lshlrev_b32 v12, 7, v8")
    A("v_lshl_add_u32 v13, v10, 4, v12")
    A("v_xor_b32 v14, 64, v13")
    A("v_bfe_u32 v8, v2, 1, 3")
    A("v_xor_b32 v8, v8, v3")
    A("s_lshl_b32 s8, s7, 15")
    A(f"s_add_u32 s8, s8, {KVL}")
    A("v_lshl_add_u32 v9, v2, 7, s8")
    for i in range(4):
        A(f"v_xor_b32 v10, {2*i}, v8")
        A(f"v_lshl_add_u32 v{20+i}, v10, 4, v9")
    A("v_lshl_add_u32 v8, v3, 2, v4")
    A("v_xor_b32 v9, v7, v6")
    A("v_lshl_add_u32 v8, v8, 7, v9")
    A("s_cmp_eq_u32 s7, 0")
    A(f"s_cselect_b32 s8, {WO_BASE[0]}, {WO_BASE[1]}")
    A("v_add_u32 v24, s8, v8")
    A("v_xor_b32 v25, 64, v24")
    O0, O1 = 32, 48
    for i in range(32):
        A(f"v_mov_b32 v{32+i}, 0")
    A("v_cmp_eq_u32 s[76:77], 0, v3")
    A("v_lshlrev_b32 v12, 4, v1")
    A("v_lshlrev_b32 v15, 7, v1")
    A("v_add_u32 v16, 8192, v15")
    A("v_and_b32 v17, 7, v1")
    A("v_lshlrev_b32 v17, 11, v17")
    A("s_and_b32 s8, s2, 15")
    A("s_lshl_b32 s8, s8, 7")
    A("v_add_u32 v17, s8, v17")
    A.wait_vm_all()
    A("s_barrier")
    stamp(A, 6)
    l = lab("ff")
    A("s_cmp_lg_u32 s3, 0")
    A(f"s_cbranch_scc1 {l}")
    A("s_lshl_b32 s8, s2, 7")
    A(f"s_add_u32 s8, s8, {WS_FF}")
    A("v_mov_b32 v9, s74")
    A("s_mov_b64 exec, 1")
    A("buffer_store_dword v9, v30, s[56:59], s8 offen sc0 sc1")
    A("s_mov_b64 exec, -1")
    A(f"{l}:")
    A("s_cmp_ge_u32 s5, 7")
    A(f"s_cbranch_scc1 {END}")
    A(f"s_mov_b32 s10, {WS_FF}")
    poll_flags(A, [17], [18], 56, "s10", 74, 11)
    PQ = 128
    A("s_lshl_b32 s8, s4, 2")
    A("s_add_u32 s8, s8, s6")
    A("s_lshl_b32 s8, s8, 15")
    A("s_lshl_b32 s9, s7, 14")
    A("s_add_u32 s8, s8, s9")
    A(f"s_add_u32 s8, s8, {WS_PQ}")
    l = lab("gp")
    A("s_cmp_eq_u32 s3, 0")
    A(f"s_cbranch_scc1 {l}")
    for i in range(4):
        if i:
            A("s_add_u32 s8, s8, 4096")
        for j in range(4):
            A(f"buffer_load_dwordx4 {vr(PQ+16*i+4*j,4)}, v12, s[56:59], s8 offen offset:{1024*j} sc1")
    l2 = lab("gq")
    A(f"s_branch {l2}")
    A(f"{l}:")
    poll_flags(A, [15, 16], [18, 19], 56, "s10", 74, 11)
    A(f"{l2}:")
    A("s_barrier")
    stamp(A, 7)
    A("s_lshl_b32 s9, s3, 13")
    A(f"s_add_u32 s11, s9, {WS_KV}")
    for k in range(8):
        A(f"s_add_u32 m0, s9, {KVL + k*1024}")
        A(f"s_add_u32 s10, s11, {k*1024}")
        A(f"buffer_load_dwordx4 v{13 + (k & 1)}, s[56:59], s10 offen sc1 lds")
    l = lab("g0")
    A("s_cmp_lg_u32 s3, 0")
    A(f"s_cbranch_scc1 {l}")
    for i in range(4):
        if i:
            A("s_add_u32 s8, s8, 4096")
        for j in range(4):
            A(f"buffer_load_dwordx4 {vr(PQ+16*i+4*j,4)}, v12, s[56:59], s8 offen offset:{1024*j} sc1")
    A(f"{l}:")
    NUM = [64, 80]
    KF = 96
    KP = 112
    OP = 120
    WF = 192
    xch_addr(A, 14, 3, 8)
    A("s_xor_b32 s9, s3, 4")
    xch_addr(A, 15, 9, 8)
    A("s_waitcnt vmcnt(0)")
    A("s_barrier")
    stamp(A, 8)

    def kv_reads(h):
        for i in range(4):
            A(f"ds_read_b128 {vr(KF+4*i,4)}, v{20+i} offset:{4096*h}")

    def kv_cvt_mfma(h):
        for i in range(8):
            A(f"v_cvt_pk_bf16_f32 v{KP+i}, v{KF+2*i}, v{KF+2*i+1}")
        n = NUM[h % 2]
        A(f"v_mfma_f32_32x32x16_bf16 {vr(n,16)}, {vr(KP,4)}, {vr(PQ+8*h,4)}, 0")
        A(f"v_mfma_f32_32x32x16_bf16 {vr(n,16)}, {vr(KP+4,4)}, {vr(PQ+8*h+4,4)}, {vr(n,16)}")

    def wo_reads(h):
        for t in range(2):
            for ct in range(2):
                for u in range(2):
                    A(f"ds_read_b64_tr_b16 {vr(WF+8*t+4*ct+2*u,2)}, v{24+ct} offset:{(28*h + 16*t + 8*u)*128}")
    kv_reads(0)
    A("s_waitcnt lgkmcnt(0)")
    kv_cvt_mfma(0)
    for h in range(8):
        n = NUM[h % 2]
        if h < 7:
            kv_reads(h + 1)
        wo_reads(h)
        if h < 7:
            A("s_waitcnt lgkmcnt(8)")
            kv_cvt_mfma(h + 1)
        A(f"v_mov_b32 v8, v{n+12}")
        A(f"v_mov_b32 v9, v{n+12}")
        A("v_permlane32_swap_b32 v8, v9")
        A(f"v_add_f32 v9, {F1EM6}, v9")
        A("v_rcp_f32 v10, v9")
        A("v_cndmask_b32 v11, 0, v10, s[76:77]")
        for i in range(6):
            A(f"v_pk_mul_f32 {vr(n+2*i,2)}, {vr(n+2*i,2)}, v[10:11] op_sel_hi:[1,0]")
        for i in range(6, 8):
            A(f"v_pk_mul_f32 {vr(n+2*i,2)}, {vr(n+2*i,2)}, v[10:11] op_sel:[0,1] op_sel_hi:[1,1]")
        for i in range(8):
            A(f"v_cvt_pk_bf16_f32 v{OP+i}, v{n+2*i}, v{n+2*i+1}")
        A("s_waitcnt lgkmcnt(0)")
        for t in range(2):
            A(f"v_mfma_f32_32x32x16_bf16 {vr(O0,16)}, {vr(WF+8*t,4)}, {vr(OP+4*t,4)}, {vr(O0,16)}")
            A(f"v_mfma_f32_32x32x16_bf16 {vr(O1,16)}, {vr(WF+8*t+4,4)}, {vr(OP+4*t,4)}, {vr(O1,16)}")
    stamp(A, 9)
    A("v_lshl_add_u32 v8, v1, 4, s14")
    A("v_lshl_add_u32 v9, v1, 4, s15")
    A("v_mul_u32_u24 v10, 1792, v2")
    A("v_lshl_add_u32 v10, v3, 4, v10")
    A("s_lshl_b32 s8, s4, 2")
    A("s_add_u32 s8, s8, s6")
    A(f"s_mul_i32 s8, s8, {32*1792}")
    A("s_lshl_b32 s9, s5, 7")
    A("s_add_u32 s8, s8, s9")
    A("s_lshl_b32 s9, s7, 6")
    A("s_add_u32 s8, s8, s9")
    A("s_add_u32 s8, s8, 896")
    A(";FLUSH")
    L1, LJ = lab("x1"), lab("xj")
    A("s_cmp_lg_u32 s7, 0")
    A(f"s_cbranch_scc1 {L1}")
    for q in range(4):
        A(f"ds_write_b128 v8, {vr(O1+4*q,4)} offset:{1024*q}")
    A(f"s_branch {LJ}")
    A(f"{L1}:")
    for q in range(4):
        A(f"ds_write_b128 v8, {vr(O0+4*q,4)} offset:{1024*q}")
    for i in range(16):
        A(f"v_mov_b32 v{O0+i}, v{O1+i}")
    A(f"{LJ}:")
    A("s_waitcnt lgkmcnt(0)")
    A("s_barrier")
    for q in range(4):
        A(f"ds_read_b128 {vr(64+4*q,4)}, v9 offset:{1024*q}")
    for q in range(4):
        A(f"s_waitcnt lgkmcnt({3-q})")
        A(f"v_pk_add_f32 {vr(O0+4*q,2)}, {vr(O0+4*q,2)}, {vr(64+4*q,2)}")
        A(f"v_pk_add_f32 {vr(O0+4*q+2,2)}, {vr(O0+4*q+2,2)}, {vr(64+4*q+2,2)}")
        A(f"v_cvt_pk_bf16_f32 v{80+2*q}, v{O0+4*q}, v{O0+4*q+1}")
        A(f"v_cvt_pk_bf16_f32 v{81+2*q}, v{O0+4*q+2}, v{O0+4*q+3}")
    for p in range(2):
        b = 80 + 4 * p
        A(f"v_permlane32_swap_b32 v{b}, v{b+2}")
        A(f"v_permlane32_swap_b32 v{b+1}, v{b+3}")
        A(f"buffer_store_dwordx4 {vr(b,4)}, v10, s[64:67], s8 offen offset:{32*p}")
    stamp(A, 10)
    stamp_flush(A)
    A(f"s_branch {END}")


def gen_kernel(name, dbg=False):
    A = Asm()
    if "entry" in OPT:
        A("s_memrealtime s[98:99]")
    A("s_cmp_ge_u32 s2, 240")
    A("s_cbranch_scc1 L_end")
    A("s_load_dwordx16 s[16:31], s[0:1], 0")
    A("s_load_dwordx8 s[32:39], s[0:1], 64")
    A("s_load_dwordx4 s[40:43], s[0:1], 96")
    A("s_load_dwordx2 s[44:45], s[0:1], 112")
    A("v_lshrrev_b32 v2, 6, v0")
    A("v_and_b32 v1, 63, v0")
    A("v_readfirstlane_b32 s3, v2")
    A("s_cmp_ge_u32 s2, 128")
    A("s_cbranch_scc1 L_roleA")
    if "noB" in OPT:
        A("s_branch L_end")
    else:
        role_B(A, dbg)
    A(";FLUSH")
    A("L_roleA:")
    A.vm = []
    role_A(A, dbg)
    A("L_end:")
    A("s_endpgm")
    body = A.finalize()
    body = body.replace("L_end", f"L_end_{name}").replace("L_roleA", f"L_roleA_{name}")
    txt = f""".globl {name}
.p2align 8
.type {name},@function
{name}:
{body}"""
    kd = f""".p2align 6
.amdhsa_kernel {name}
  .amdhsa_next_free_vgpr 216
  .amdhsa_next_free_sgpr 102
  .amdhsa_accum_offset 216
  .amdhsa_group_segment_fixed_size 0
  .amdhsa_kernarg_size 120
  .amdhsa_user_sgpr_count 2
  .amdhsa_user_sgpr_kernarg_segment_ptr 1
  .amdhsa_system_sgpr_workgroup_id_x 1
.end_amdhsa_kernel
"""
    return txt, kd, A.nops


def build(mode, dbg=False):
    ref = open("cdna_kernels/%s.s.ref" % NAME).read()
    hdr = [l for l in ref.split("\n") if l.startswith(";") and "@launch" not in l]
    hdr = hdr[:16]
    if True:
        ks = [(NAME + "_kernel", ())]
        launches = [f"; @launch grid=(240,1,1) block=(512,1,1) lds={LDS_BYTES}"]
    out = "\n".join(hdr + launches) + "\n"
    out += '.amdgcn_target "amdgcn-amd-amdhsa--gfx950"\n.text\n'
    kds = ""
    for n, f in ks:
        t, kd, nops = gen_kernel(n, *f, dbg=dbg)
        out += t
        kds += kd
        print(n, "nops inserted:", nops, file=sys.stderr)
    out += '.section .rodata,"a"\n' + kds
    return out


if __name__ == "__main__":
    mode = sys.argv[1] if len(sys.argv) > 1 else "single"
    path = sys.argv[2] if len(sys.argv) > 2 else "cdna_kernels/%s.s" % NAME
    dbg = "dbg" in sys.argv[3:]
    STAMPS[0] = "stamps" in sys.argv[3:]
    OPT.update(sys.argv[3:])
    open(path, "w").write(build(mode, dbg))
```
